```python
import torch

def _softmax(x, axis=-1):
    return torch.softmax(x, dim=axis)
def _gelu(x):
    return torch.nn.functional.gelu(x, approximate="tanh")
def _silu(x):
    return torch.nn.functional.silu(x)
def _sigmoid(x):
    return torch.sigmoid(x)
def _layernorm(x, axis=-1, eps=1e-5):
    m = x.mean(dim=axis, keepdim=True)
    v = x.var(dim=axis, keepdim=True, unbiased=False)
    return (x - m) / torch.sqrt(v + eps)
def _scatter_add(tgt, idx, src, axis=0):
    return tgt.clone().index_add_(axis, idx, src)
def _segment_sum(src, seg, n):
    out = torch.zeros((n,) + src.shape[1:], dtype=src.dtype)
    return out.index_add_(0, seg, src)
def _pad(x, pw):
    flat = tuple(v for pair in reversed(pw) for v in pair)
    return torch.nn.functional.pad(x, flat)

kernel_name = 'concat_heads__gqa_block_cached__mha_block_cached__near_ridge'

def setup_inputs():

    _w = (lambda a: (lambda t: t.to(torch.bfloat16) if t.is_floating_point() else t)(torch.as_tensor(a)))
    def _A_setup():
        B, Sq, D = 8, 64, 512
        Hq, Hkv, Sk, Dh = 32, 8, 1024, 128
        assert Hq % Hkv == 0, (Hq, Hkv)
        return {
            "x": _w((lambda *s: torch.randn(*s, dtype=torch.bfloat16) * 0.8)(B, Sq, D)),
            "k_cache": _w((lambda *s: torch.randn(*s, dtype=torch.bfloat16) * 0.8)(B, Hkv, Sk, Dh)),
            "v_cache": _w((lambda *s: torch.randn(*s, dtype=torch.bfloat16) * 0.05)(B, Hkv, Sk, Dh)),
            "wq": _w((lambda *s: torch.randn(*s, dtype=torch.bfloat16) * 0.8)(D, Hq * Dh) * (D ** -0.5)),
            "wo": _w((lambda *s: torch.randn(*s, dtype=torch.bfloat16) * 0.05)(Hq * Dh, D) * ((Hq * Dh) ** -0.5)),
        }
    _A_in = _A_setup()

    def _B_setup():
        B, Sq, D = 8, 64, 512
        H, Sk, Dh = 32, 1024, 128
        return {
            "x": _w((lambda *s: torch.randn(*s, dtype=torch.bfloat16) * 0.8)(B, Sq, D)),
            "k_cache": _w((lambda *s: torch.randn(*s, dtype=torch.bfloat16) * 0.8)(B, H, Sk, Dh)),
            "v_cache": _w((lambda *s: torch.randn(*s, dtype=torch.bfloat16) * 0.05)(B, H, Sk, Dh)),
            "wq": _w((lambda *s: torch.randn(*s, dtype=torch.bfloat16) * 0.8)(D, H * Dh) * (D ** -0.5)),
            "wo": _w((lambda *s: torch.randn(*s, dtype=torch.bfloat16) * 0.05)(H * Dh, D) * ((H * Dh) ** -0.5)),
        }
    _B_in = _B_setup()

    return {
        "A_x": _A_in["x"],
        "A_k_cache": _A_in["k_cache"],
        "A_v_cache": _A_in["v_cache"],
        "A_wq": _A_in["wq"],
        "A_wo": _A_in["wo"],
        "B_x": _B_in["x"],
        "B_k_cache": _B_in["k_cache"],
        "B_v_cache": _B_in["v_cache"],
        "B_wq": _B_in["wq"],
        "B_wo": _B_in["wo"],
    }

def reference(A_x, A_k_cache, A_v_cache, A_wq, A_wo, B_x, B_k_cache, B_v_cache, B_wq, B_wo):
    def _A_ref(x, k_cache, v_cache, wq, wo):
        B, Sq, D = x.shape
        Hq, Dh = 32, 128
        Hkv = k_cache.shape[1]
        rep = Hq // Hkv
        q = (lambda x, *d: x.permute(*d))((x @ wq).reshape(B, Sq, Hq, Dh), 0, 2, 1, 3)
        k = (lambda x, n, axis: torch.repeat_interleave(x, n, dim=axis))(k_cache, rep, axis=1)
        v = (lambda x, n, axis: torch.repeat_interleave(x, n, dim=axis))(v_cache, rep, axis=1)
        scores = torch.einsum("bhqd,bhkd->bhqk", q, k) * (Dh ** -0.5)
        p = _softmax(scores, axis=-1)
        o = torch.einsum("bhqk,bhkd->bhqd", p, v)
        return (lambda x, *d: x.permute(*d))(o, 0, 2, 1, 3).reshape(B, Sq, Hq * Dh) @ wo

    def _B_ref(x, k_cache, v_cache, wq, wo):
        B, Sq, D = x.shape
        H, Dh = 32, 128
        q = (lambda x, *d: x.permute(*d))((x @ wq).reshape(B, Sq, H, Dh), 0, 2, 1, 3)
        scores = torch.einsum("bhqd,bhkd->bhqk", q, k_cache) * (Dh ** -0.5)
        p = _softmax(scores, axis=-1)
        o = torch.einsum("bhqk,bhkd->bhqd", p, v_cache)
        return (lambda x, *d: x.permute(*d))(o, 0, 2, 1, 3).reshape(B, Sq, H * Dh) @ wo

    a = _A_ref(A_x, A_k_cache, A_v_cache, A_wq, A_wo)
    b = _B_ref(B_x, B_k_cache, B_v_cache, B_wq, B_wo)
    return torch.concatenate([a, b], axis=-1)
```

```python
import math, sys

NAME = "concat_heads__gqa_block_cached__mha_block_cached__near_ridge"

HEADER = """; Kernarg layout for this problem (104 bytes, ptrs only, base s[0:1]):
"""

OPT = dict(nt=0, nocompute=0, k2=1)
for arg in sys.argv[2:]:
    k, v = arg.split("=")
    OPT[k] = int(v)


def f32hex(x):
    import struct
    return "0x%08x" % struct.unpack("<I", struct.pack("<f", x))[0]


class Asm:
    def __init__(self):
        self.lines = []
        self.vm = 0
        self.uid = 0

    def __call__(self, s):
        self.lines.append("    " + s)

    def label(self, l):
        self.lines.append(l + ":")

    def c(self, s):
        self.lines.append("    ; " + s)

    def vmem(self, s):
        self(s)
        self.vm += 1
        return self.vm - 1

    def wait_vm(self, idx):
        n = self.vm - idx - 1
        assert 0 <= n <= 63, n
        self("s_waitcnt vmcnt(%d)" % n)

    def text(self):
        return "\n".join(self.lines) + "\n"


def vr(b, n=1):
    return "v%d" % b if n == 1 else "v[%d:%d]" % (b, b + n - 1)


def ar(b, n=1):
    return "a%d" % b if n == 1 else "a[%d:%d]" % (b, b + n - 1)


def sr(b, n=1):
    return "s%d" % b if n == 1 else "s[%d:%d]" % (b, b + n - 1)


def interleave(a, mfmas, fillers, lead=0):
    n = len(mfmas)
    gaps = n - lead
    done = 0
    for i, m in enumerate(mfmas):
        a(m)
        if i >= lead and gaps > 0:
            want = (len(fillers) * (i - lead + 1) + gaps - 1) // gaps
            while done < want:
                emit(a, fillers[done])
                done += 1
    while done < len(fillers):
        emit(a, fillers[done])
        done += 1


def emit(a, f):
    if f.endswith(":"):
        a.label(f[:-1])
    else:
        a(f)


SCALE = 128 ** -0.5
CEXP = SCALE * math.log2(math.e)
TLAZY = 8.0
RING = 32768
SCR = 131072
LDS1 = 163840
ITEM_JUMP = 4 * 32 * 262144 - 262144
SEL_LO = 0x05040100
SEL_HI = 0x07060302

S_K, S_V, S_X, S_W, S_O = 4, 8, 12, 16, 20
S_WAVE, S_TYPE, S_PF, S_T, S_RING = 24, 25, 26, 27, 28
S_XOFF, S_WOFF, S_C, S_SELLO, S_SELHI = 29, 30, 31, 32, 33
S_OOFF0, S_OOFF1, S_PASS, S_TMP, S_TMP2, S_M0K, S_M0V, S_FIRST = 34, 35, 36, 37, 38, 39, 40, 41
S_T8, S_JUMP, S_OOFF = 42, 43, 44
S_P = 48

V_LANE, V_KA, V_VA, V_TA, V_TB = 0, 1, 2, 3, 4
V_DMA = 5
V_MC = 9
V_L = 13
V_TMAX = 17
V_T0 = 18
V_OVOFF = 26
V_L16 = 27
V_QA0 = 28
V_VF = 32
V_KF = 64
V_S = 96
V_Q = 128


def gemm_direct(a, NC, KS, DEPTH, v_w, v_x, v_raw, v_xf, v_af, v_acc, srd_x, srd_w, s_xoff, s_woff,
                wstep, extra=None, ldflags=""):
    RW = NC // 2
    ldw = "buffer_load_dword" if RW == 1 else "buffer_load_dwordx2"
    last = {}

    def issue(ks):
        st = ks % DEPTH
        for j in range(8):
            a.vmem("%s %s, %s, %s, %s offen" % (ldw, vr(v_raw + (st * 8 + j) * RW, RW), vr(v_w + j), sr(srd_w, 4), sr(s_woff)))
        for qq in range(4):
            idx = a.vmem("buffer_load_dwordx4 %s, %s, %s, %s offen offset:%d%s" % (
                vr(v_xf + st * 16 + qq * 4, 4), vr(v_x + qq), sr(srd_x, 4), sr(s_xoff), 64 * ks, ldflags))
        last[ks] = idx
        a("s_add_u32 %s, %s, %d" % (sr(s_woff), sr(s_woff), wstep))
        if extra:
            extra(ks)

    for ks in range(min(DEPTH, KS)):
        issue(ks)
    for ks in range(KS):
        st = ks % DEPTH
        a.wait_vm(last[ks])
        for i in range(NC):
            w, e = i >> 1, i & 1
            for t in range(4):
                r0 = v_raw + (st * 8 + 2 * t) * RW + w
                r1 = v_raw + (st * 8 + 2 * t + 1) * RW + w
                a("v_perm_b32 %s, %s, %s, %s" % (vr(v_af + i * 4 + t), vr(r1), vr(r0), sr(S_SELHI if e else S_SELLO)))
        a("s_nop 1")
        for i in range(NC):
            for qq in range(4):
                acc = vr(v_acc + (i * 4 + qq) * 4, 4)
                a("v_mfma_f32_16x16x32_bf16 %s, %s, %s, %s" % (acc, vr(v_af + i * 4, 4), vr(v_xf + st * 16 + qq * 4, 4),
                                                              "0" if ks == 0 else acc))
        if ks + DEPTH < KS:
            issue(ks + DEPTH)


def dma_unit(a, srd, s_m0_base, slot_imm, s_goff, lst=None):
    out = []
    nt = " nt" if OPT["nt"] else ""
    for g in range(2):
        if g == 0:
            out.append("s_mov_b32 m0, %s" % sr(s_m0_base))
            out.append("s_mov_b32 %s, %s" % (sr(S_TMP), sr(s_goff)))
        else:
            out.append("s_add_u32 m0, %s, 4096" % sr(s_m0_base))
            out.append("s_add_u32 %s, %s, 4096" % (sr(S_TMP), sr(s_goff)))
        for n in range(4):
            out.append("buffer_load_dwordx4 %s, %s, %s offen offset:%d%s lds" % (vr(V_DMA + n), sr(srd, 4), sr(S_TMP), n * 1024, nt))
    return out


def softmax_ops(j, sb, tag):
    f = []
    t0, t1, t2, t3, t4 = V_T0, V_T0 + 1, V_T0 + 2, V_T0 + 3, V_T0 + 4
    s = lambda i: vr(sb + i)
    f.append("v_max3_f32 %s, %s, %s, %s" % (vr(t0), s(0), s(1), s(2)))
    f.append("v_max3_f32 %s, %s, %s, %s" % (vr(t1), s(3), s(4), s(5)))
    f.append("v_max3_f32 %s, %s, %s, %s" % (vr(t2), s(6), s(7), s(8)))
    f.append("v_max3_f32 %s, %s, %s, %s" % (vr(t3), s(9), s(10), s(11)))
    f.append("v_max3_f32 %s, %s, %s, %s" % (vr(t4), s(12), s(13), s(14)))
    f.append("v_max3_f32 %s, %s, %s, %s" % (vr(t0), vr(t0), vr(t1), s(15)))
    f.append("v_max3_f32 %s, %s, %s, %s" % (vr(t2), vr(t2), vr(t3), vr(t4)))
    f.append("v_max_f32 %s, %s, %s" % (vr(V_TMAX), vr(t0), vr(t2)))
    f.append("v_fma_f32 %s, %s, %s, -%s" % (vr(t0), vr(V_TMAX), sr(S_C), vr(V_MC + j)))
    f.append("v_cmp_lt_f32 vcc, %s, %s" % (sr(S_T8), vr(t0)))
    f.append("s_cbranch_vccnz L_slow_%s" % tag)
    f.append("L_back_%s:" % tag)
    for i in range(16):
        f.append("v_fma_f32 %s, %s, %s, -%s" % (s(i), s(i), sr(S_C), vr(V_MC + j)))
        if i >= 1:
            f.append("v_exp_f32 %s, %s" % (s(i - 1), s(i - 1)))
        if i >= 3:
            f.append("v_add_f32 %s, %s, %s" % (vr(V_L + j), vr(V_L + j), s(i - 3)))
        if i >= 4 and i % 2 == 0:
            p = (i - 4) // 2
            f.append("v_cvt_pk_bf16_f32 %s, %s, %s" % (s(p), s(2 * p), s(2 * p + 1)))
    f.append("v_exp_f32 %s, %s" % (s(15), s(15)))
    f.append("v_add_f32 %s, %s, %s" % (vr(V_L + j), vr(V_L + j), s(13)))
    f.append("v_cvt_pk_bf16_f32 %s, %s, %s" % (s(6), s(12), s(13)))
    f.append("v_add_f32 %s, %s, %s" % (vr(V_L + j), vr(V_L + j), s(14)))
    f.append("v_add_f32 %s, %s, %s" % (vr(V_L + j), vr(V_L + j), s(15)))
    f.append("v_cvt_pk_bf16_f32 %s, %s, %s" % (s(7), s(14), s(15)))
    return f


def check_softmax_order():
    pass


def slow_path(a, j, obase, tag):
    t0, t1, t2 = V_T0, V_T0 + 1, V_T0 + 2
    a.label("L_slow_%s" % tag)
    a("v_mov_b32 %s, %s" % (vr(t0), vr(V_TMAX)))
    a("v_mov_b32 %s, %s" % (vr(t1), vr(V_TMAX)))
    a("s_nop 1")
    a("v_permlane32_swap_b32 %s, %s" % (vr(t0), vr(t1)))
    a("s_nop 1")
    a("v_max_f32 %s, %s, %s" % (vr(t0), vr(t0), vr(t1)))
    a("v_mul_f32 %s, %s, %s" % (vr(t0), sr(S_C), vr(t0)))
    a("v_max_f32 %s, %s, %s" % (vr(t0), vr(t0), vr(V_MC + j)))
    a("v_sub_f32 %s, %s, %s" % (vr(t1), vr(V_MC + j), vr(t0)))
    a("v_exp_f32 %s, %s" % (vr(t1), vr(t1)))
    a("v_mov_b32 %s, %s" % (vr(V_MC + j), vr(t0)))
    a("v_mul_f32 %s, %s, %s" % (vr(V_L + j), vr(V_L + j), vr(t1)))
    a("s_cmp_eq_u32 %s, 0" % sr(S_T))
    a("s_cbranch_scc1 L_back_%s" % tag)
    a("s_nop 7")
    a("s_nop 7")
    for r in range(0, 64, 4):
        for q in range(4):
            a("v_accvgpr_read_b32 %s, %s" % (vr(t2 + q), ar(obase + r + q)))
        for q in range(4):
            a("v_mul_f32 %s, %s, %s" % (vr(t2 + q), vr(t2 + q), vr(t1)))
        for q in range(4):
            a("v_accvgpr_write_b32 %s, %s" % (ar(obase + r + q), vr(t2 + q)))
    a("s_nop 1")
    a("s_branch L_back_%s" % tag)


def qk_mfmas(j, sb):
    out = []
    for s in range(8):
        d = vr(sb, 16)
        out.append("v_mfma_f32_32x32x16_bf16 %s, %s, %s, %s" % (d, vr(V_KF + 4 * s, 4), vr(V_Q + (j * 8 + s) * 4, 4), "0" if s == 0 else d))
    return out


def pv_mfmas(j, sb):
    out = []
    for ks in range(2):
        for db in range(4):
            o = ar(j * 64 + db * 16, 16)
            out.append("v_mfma_f32_32x32x16_bf16 %s, %s, %s, %s" % (o, vr(V_VF + (db * 2 + ks) * 4, 4), vr(sb + 4 * ks, 4), o))
    return out


def tile_loop(a, NQB, tag):
    a("s_mov_b32 %s, 0" % sr(S_T))
    a.label("L_tile_%s" % tag)
    a("s_waitcnt vmcnt(24)")
    for s in range(8):
        ta = V_TA if s % 2 == 0 else V_TB
        if s == 0:
            a("ds_read_b128 %s, %s" % (vr(V_KF, 4), vr(V_KA)))
        else:
            a("v_xor_b32 %s, %d, %s" % (vr(ta), 32 * s, vr(V_KA)))
            a("ds_read_b128 %s, %s" % (vr(V_KF + 4 * s, 4), vr(ta)))
    nocomp = OPT["nocompute"]
    m = qk_mfmas(0, V_S)
    for s in range(8):
        a("s_waitcnt lgkmcnt(%d)" % (7 - s))
        if not nocomp:
            a(m[s])
    for x in dma_unit(a, S_K, S_M0K, 0, S_PF):
        a(x)
    a("s_waitcnt vmcnt(24)")
    vreads = []
    k = 0
    for db in range(4):
        for hr in range(2):
            ta = V_TA if k % 2 == 0 else V_TB
            k += 1
            x = db * 64 + hr * 32
            if x:
                vreads.append("v_xor_b32 %s, %d, %s" % (vr(ta), x, vr(V_VA)))
                ad = ta
            else:
                ad = V_VA
            for ks in range(2):
                vreads.append("ds_read_b64_tr_b16 %s, %s offset:%d" % (vr(V_VF + (db * 2 + ks) * 4 + 2 * hr, 2), vr(ad), ks * 4096 + hr * 2048))
    half = len(vreads) // 2
    for x in vreads[:half + 1]:
        a(x)
    vreads = vreads[:half + 1] + vreads[half + 1:half + 4] + ["s_waitcnt lgkmcnt(6)"] + vreads[half + 4:]
    post_v = ["s_waitcnt lgkmcnt(0)"] + dma_unit(a, S_V, S_M0V, 0, S_PF) + [
        "s_add_u32 %s, %s, 32768" % (sr(S_PF), sr(S_PF)),
        "s_add_u32 %s, %s, 1" % (sr(S_T), sr(S_T)),
        "s_cmp_eq_u32 %s, 6" % sr(S_T),
        "s_cselect_b32 %s, %s, 0" % (sr(S_TMP2), sr(S_JUMP)),
        "s_add_u32 %s, %s, %s" % (sr(S_PF), sr(S_PF), sr(S_TMP2)),
        "s_xor_b32 %s, %s, 16384" % (sr(S_M0K), sr(S_M0K)),
        "s_xor_b32 %s, %s, 16384" % (sr(S_M0V), sr(S_M0V)),
        "v_xor_b32 %s, 16384, %s" % (vr(V_KA), vr(V_KA)),
        "v_xor_b32 %s, 16384, %s" % (vr(V_VA), vr(V_VA)),
    ]
    if nocomp:
        for x in vreads[half + 1:] + post_v:
            a(x)
    else:
        SB = lambda j: V_S + 16 * (j & 1)
        dma_part = post_v[:-9]
        tail_part = post_v[-9:]
        interleave(a, qk_mfmas(1, SB(1)), vreads[half + 1:] + softmax_ops(0, SB(0), tag + "0"))
        if NQB == 2:
            for x in dma_part[:1]:
                a(x)
            a("s_nop 1")
            interleave(a, pv_mfmas(0, SB(0)), ["s_nop 3"] + dma_part[1:] + softmax_ops(1, SB(1), tag + "1"))
            a("s_nop 1")
            interleave(a, pv_mfmas(1, SB(1)), tail_part)
        else:
            for x in dma_part[:1]:
                a(x)
            a("s_nop 1")
            interleave(a, pv_mfmas(0, SB(0)) + qk_mfmas(2, SB(2)), ["s_nop 3"] + dma_part[1:] + softmax_ops(1, SB(1), tag + "1"))
            a("s_nop 1")
            interleave(a, pv_mfmas(1, SB(1)) + qk_mfmas(3, SB(3)), ["s_nop 7", "s_nop 3"] + softmax_ops(2, SB(2), tag + "2"))
            a("s_nop 1")
            interleave(a, pv_mfmas(2, SB(2)), ["s_nop 7", "s_nop 3"] + softmax_ops(3, SB(3), tag + "3"))
            a("s_nop 1")
            interleave(a, pv_mfmas(3, SB(3)), tail_part)
    a("s_cmp_lt_u32 %s, 8" % sr(S_T))
    a("s_cbranch_scc1 L_tile_%s" % tag)


def init_pass(a, NQB):
    for j in range(NQB):
        a("v_mov_b32 %s, %s" % (vr(V_MC + j), f32hex(-1e30)))
        a("v_mov_b32 %s, 0" % vr(V_L + j))
    for r in range(NQB * 64):
        a("v_accvgpr_write_b32 %s, 0" % ar(r))


def combine(a, j0, s_ooff, oneshot):
    t = V_T0
    F = 32
    RB = 64
    OUT = 96
    AD = 40
    a.c("combine: stats")
    a("s_nop 7")
    a("s_nop 7")
    for jj in range(2):
        j = j0 + jj
        a("v_mov_b32 %s, %s" % (vr(t), vr(V_L + j)))
        a("v_mov_b32 %s, %s" % (vr(t + 1), vr(V_L + j)))
        a("s_nop 1")
        a("v_permlane32_swap_b32 %s, %s" % (vr(t), vr(t + 1)))
        a("s_nop 1")
        a("v_add_f32 %s, %s, %s" % (vr(t + 3 + 2 * jj), vr(t), vr(t + 1)))
        a("v_mov_b32 %s, %s" % (vr(t + 2 + 2 * jj), vr(V_MC + j)))
    a("s_lshl_b32 %s, %s, 10" % (sr(S_TMP), sr(S_WAVE)))
    a("s_add_u32 %s, %s, %d" % (sr(S_TMP), sr(S_TMP), SCR))
    a("v_lshlrev_b32 %s, 3, %s" % (vr(AD), vr(V_LANE)))
    a("v_add_u32 %s, %s, %s" % (vr(AD + 1), sr(S_TMP), vr(AD)))
    a("ds_write_b64 %s, %s" % (vr(AD + 1), vr(t + 2, 2)))
    a("ds_write_b64 %s, %s offset:512" % (vr(AD + 1), vr(t + 4, 2)))

    def write_round(rho, vaddr, imm):
        jj, dp = rho >> 1, rho & 1
        for blk in range(2):
            for q in range(4):
                a("ds_write_b128 %s, %s offset:%d" % (vr(vaddr), ar((j0 + jj) * 64 + (2 * dp + blk) * 16 + 4 * q, 4), imm + (blk * 4 + q) * 1024))

    def read_stats():
        a("v_add_u32 %s, %d, %s" % (vr(AD + 1), SCR, vr(AD)))
        for jj in range(2):
            for w in range(4):
                a("ds_read_b64 %s, %s offset:%d" % (vr(RB + (jj * 4 + w) * 2, 2), vr(AD + 1), (w * 2 + jj) * 512))
        a("s_waitcnt lgkmcnt(0)")
        for jj in range(2):
            m = lambda w: vr(RB + (jj * 4 + w) * 2)
            l = lambda w: vr(RB + (jj * 4 + w) * 2 + 1)
            a("v_max3_f32 %s, %s, %s, %s" % (vr(t), m(0), m(1), m(2)))
            a("v_max_f32 %s, %s, %s" % (vr(t), vr(t), m(3)))
            for w in range(4):
                a("v_sub_f32 %s, %s, %s" % (vr(F + jj * 4 + w), m(w), vr(t)))
            for w in range(4):
                a("v_exp_f32 %s, %s" % (vr(F + jj * 4 + w), vr(F + jj * 4 + w)))
            a("s_nop 0")
            a("v_mul_f32 %s, %s, %s" % (vr(t + 1), vr(F + jj * 4), l(0)))
            for w in range(1, 4):
                a("v_fmac_f32 %s, %s, %s" % (vr(t + 1), vr(F + jj * 4 + w), l(w)))
            a("v_rcp_f32 %s, %s" % (vr(t + 1), vr(t + 1)))
            a("s_nop 0")
            for w in range(4):
                a("v_mul_f32 %s, %s, %s" % (vr(F + jj * 4 + w), vr(F + jj * 4 + w), vr(t + 1)))

    def reduce_round(rho, vaddr, wstride, imm):
        jj, dp = rho >> 1, rho & 1
        for w in range(4):
            for q in range(2):
                off = imm + w * wstride + q * 1024
                if off < 65536:
                    a("ds_read_b128 %s, %s offset:%d" % (vr(RB + (w * 2 + q) * 4, 4), vr(vaddr), off))
                else:
                    a("ds_read_b128 %s, %s offset:%d" % (vr(RB + (w * 2 + q) * 4, 4), vr(vaddr + 1), off - 65536))
        for w in range(4):
            a("s_waitcnt lgkmcnt(%d)" % (6 - 2 * w))
            for e in range(8):
                if w == 0:
                    a("v_mul_f32 %s, %s, %s" % (vr(OUT + e), vr(F + jj * 4), vr(RB + e)))
                else:
                    a("v_fmac_f32 %s, %s, %s" % (vr(OUT + e), vr(F + jj * 4 + w), vr(RB + w * 8 + e)))
        o4 = OUT + 8 + 4 * (rho & 1)
        for e in range(4):
            a("v_cvt_pk_bf16_f32 %s, %s, %s" % (vr(o4 + e), vr(OUT + 2 * e), vr(OUT + 2 * e + 1)))
        if jj == 1:
            a("s_add_u32 %s, %s, 262144" % (sr(S_TMP), sr(s_ooff)))
            so = S_TMP
        else:
            so = s_ooff
        a("buffer_store_dwordx4 %s, %s, %s, %s offen offset:%d" % (vr(o4, 4), vr(V_OVOFF), sr(S_O, 4), sr(so), dp * 128))

    a("s_lshl_b32 %s, %s, 11" % (sr(S_TMP2), sr(S_WAVE)))
    if oneshot:
        a("s_waitcnt vmcnt(0)")
        a("v_add_u32 %s, %s, %s" % (vr(AD + 2), sr(S_RING), vr(V_L16)))
        for rho in range(4):
            write_round(rho, AD + 2, rho * 8192)
        a("s_waitcnt lgkmcnt(0)")
        a("s_barrier")
        read_stats()
        a("v_add_u32 %s, %s, %s" % (vr(AD + 4), sr(S_TMP2), vr(V_L16)))
        a("v_add_u32 %s, 65536, %s" % (vr(AD + 5), vr(AD + 4)))
        for rho in range(4):
            reduce_round(rho, AD + 4, RING, rho * 8192)
        a("s_barrier")
    else:
        a("s_waitcnt lgkmcnt(0)")
        a("s_barrier")
        read_stats()
        a("s_barrier")
        a("s_lshl_b32 %s, %s, 13" % (sr(S_TMP), sr(S_WAVE)))
        a("s_add_u32 %s, %s, %d" % (sr(S_TMP), sr(S_TMP), SCR))
        a("v_add_u32 %s, %s, %s" % (vr(AD + 2), sr(S_TMP), vr(V_L16)))
        a("s_add_u32 %s, %s, %d" % (sr(S_TMP2), sr(S_TMP2), SCR))
        a("v_add_u32 %s, %s, %s" % (vr(AD + 4), sr(S_TMP2), vr(V_L16)))
        for rho in range(4):
            write_round(rho, AD + 2, 0)
            a("s_waitcnt lgkmcnt(0)")
            a("s_barrier")
            reduce_round(rho, AD + 4, 8192, 0)
            a("s_barrier")


def kernel1(a):
    a.label("attn_kernel")
    a("s_cmp_ge_u32 s2, 256")
    a("s_cbranch_scc1 L_end1")
    a("s_load_dwordx16 %s, s[0:1], 0" % sr(S_P, 16))
    a("s_load_dwordx2 %s, s[0:1], 64" % sr(S_P + 16, 2))
    a("s_load_dwordx2 %s, s[0:1], 96" % sr(S_P + 18, 2))
    a("v_lshrrev_b32 v1, 6, v0")
    a("v_and_b32 %s, 63, v0" % vr(V_LANE))
    a("v_readfirstlane_b32 %s, v1" % sr(S_WAVE))
    a("s_and_b32 s3, s2, 7")
    a("s_lshr_b32 s45, s2, 3")
    a("s_cmp_ge_u32 s45, 16")
    a("s_cselect_b32 %s, 1, 0" % sr(S_TYPE))
    a("s_mov_b32 %s, %s" % (sr(S_C), f32hex(CEXP)))
    a("s_mov_b32 %s, 0x%08x" % (sr(S_SELLO), SEL_LO))
    a("s_mov_b32 %s, 0x%08x" % (sr(S_SELHI), SEL_HI))
    a("s_mov_b32 %s, %s" % (sr(S_T8), f32hex(TLAZY)))
    a("s_mov_b32 %s, %d" % (sr(S_JUMP), ITEM_JUMP))
    a("s_lshr_b32 s46, %s, 1" % sr(S_WAVE))
    a("s_and_b32 s47, %s, 1" % sr(S_WAVE))
    a("s_lshl_b32 %s, %s, 15" % (sr(S_RING), sr(S_WAVE)))
    a("s_waitcnt lgkmcnt(0)")
    a("s_cmp_eq_u32 %s, 1" % sr(S_TYPE))
    a("s_cbranch_scc1 L_setupA")
    a("s_and_b32 s76, s45, 3")
    a("s_lshl_b32 s77, s3, 2")
    a("s_add_u32 s76, s76, s77")
    a("s_lshr_b32 s77, s45, 2")
    a("s_lshl_b32 s78, s77, 5")
    a("s_add_u32 s78, s78, s76")
    a("s_lshl_b32 s78, s78, 18")
    a("s_add_u32 %s, %s, s78" % (sr(S_K), sr(S_P + 12)))
    a("s_addc_u32 %s, %s, 0" % (sr(S_K + 1), sr(S_P + 13)))
    a("s_add_u32 %s, %s, s78" % (sr(S_V), sr(S_P + 14)))
    a("s_addc_u32 %s, %s, 0" % (sr(S_V + 1), sr(S_P + 15)))
    a("s_mov_b32 %s, %d" % (sr(S_K + 2), 4 * 32 * 262144 + 262144))
    a("s_mov_b32 %s, %s" % (sr(S_X), sr(S_P + 10)))
    a("s_mov_b32 %s, %s" % (sr(S_X + 1), sr(S_P + 11)))
    a("s_mov_b32 %s, %s" % (sr(S_W), sr(S_P + 16)))
    a("s_mov_b32 %s, %s" % (sr(S_W + 1), sr(S_P + 17)))
    a("s_lshl_b32 s79, s46, 2")
    a("s_add_u32 s79, s79, s77")
    a("s_lshl_b32 %s, s79, 16" % sr(S_XOFF))
    a("s_lshl_b32 %s, s76, 8" % sr(S_WOFF))
    a("s_lshl_b32 %s, s77, 19" % sr(S_OOFF0))
    a("s_lshl_b32 s79, s76, 8")
    a("s_add_u32 %s, %s, s79" % (sr(S_OOFF0), sr(S_OOFF0)))
    a("s_add_u32 %s, %s, %d" % (sr(S_OOFF0), sr(S_OOFF0), 4 << 20))
    a("s_add_u32 %s, %s, %d" % (sr(S_OOFF1), sr(S_OOFF0), 4 << 19))
    a("s_branch L_setup_done")
    a.label("L_setupA")
    a("s_sub_u32 s45, s45, 16")
    a("s_lshr_b32 s77, s45, 1")
    a("s_and_b32 s76, s45, 1")
    a("s_lshl_b32 s76, s76, 1")
    a("s_lshl_b32 s78, s3, 2")
    a("s_add_u32 s76, s76, s78")
    a("s_lshl_b32 s78, s77, 3")
    a("s_add_u32 s78, s78, s3")
    a("s_lshl_b32 s78, s78, 18")
    a("s_add_u32 %s, %s, s78" % (sr(S_K), sr(S_P + 2)))
    a("s_addc_u32 %s, %s, 0" % (sr(S_K + 1), sr(S_P + 3)))
    a("s_add_u32 %s, %s, s78" % (sr(S_V), sr(S_P + 4)))
    a("s_addc_u32 %s, %s, 0" % (sr(S_V + 1), sr(S_P + 5)))
    a("s_mov_b32 %s, 262144" % sr(S_K + 2))
    a("s_mov_b32 %s, %s" % (sr(S_X), sr(S_P + 0)))
    a("s_mov_b32 %s, %s" % (sr(S_X + 1), sr(S_P + 1)))
    a("s_mov_b32 %s, %s" % (sr(S_W), sr(S_P + 6)))
    a("s_mov_b32 %s, %s" % (sr(S_W + 1), sr(S_P + 7)))
    a("s_lshl_b32 %s, s77, 16" % sr(S_XOFF))
    a("s_add_u32 s79, s76, s46")
    a("s_lshl_b32 %s, s79, 8" % sr(S_WOFF))
    a("s_lshl_b32 %s, s77, 19" % sr(S_OOFF0))
    a("s_lshl_b32 s79, s76, 8")
    a("s_add_u32 %s, %s, s79" % (sr(S_OOFF0), sr(S_OOFF0)))
    a("s_add_u32 %s, %s, 256" % (sr(S_OOFF1), sr(S_OOFF0)))
    a.label("L_setup_done")
    a("s_lshl_b32 s79, s47, 7")
    a("s_add_u32 %s, %s, s79" % (sr(S_WOFF), sr(S_WOFF)))
    a("s_mov_b32 %s, %s" % (sr(S_V + 2), sr(S_K + 2)))
    a("s_mov_b32 %s, 0x00020000" % sr(S_K + 3))
    a("s_mov_b32 %s, 0x00020000" % sr(S_V + 3))
    a("s_mov_b32 %s, 524288" % sr(S_X + 2))
    a("s_mov_b32 %s, 0x00020000" % sr(S_X + 3))
    a("s_mov_b32 %s, 4194304" % sr(S_W + 2))
    a("s_mov_b32 %s, 0x00020000" % sr(S_W + 3))
    a("s_mov_b32 %s, %s" % (sr(S_O), sr(S_P + 18)))
    a("s_mov_b32 %s, %s" % (sr(S_O + 1), sr(S_P + 19)))
    a("s_mov_b32 %s, %d" % (sr(S_O + 2), 8 << 20))
    a("s_mov_b32 %s, 0x00020000" % sr(S_O + 3))
    a("s_lshl_b32 %s, %s, 13" % (sr(S_PF), sr(S_WAVE)))
    a("s_mov_b32 %s, %s" % (sr(S_M0K), sr(S_RING)))
    a("s_add_u32 %s, %s, 8192" % (sr(S_M0V), sr(S_RING)))

    L = V_LANE
    a("v_lshlrev_b32 %s, 4, %s" % (vr(V_L16), vr(L)))
    a("v_lshrrev_b32 v40, 4, %s" % vr(L))
    a("v_and_b32 v41, 15, %s" % vr(L))
    a("v_lshlrev_b32 v42, 2, v40")
    a("v_xor_b32 v42, v42, v41")
    a("v_lshlrev_b32 v42, 4, v42")
    a("v_lshl_add_u32 %s, v40, 8, v42" % vr(V_DMA))
    for n in range(1, 4):
        a("v_xor_b32 %s, %d, %s" % (vr(V_DMA + n), 16 * n, vr(V_DMA)))
    a("v_and_b32 v43, 3, v41")
    a("v_lshlrev_b32 v43, 2, v43")
    a("v_lshrrev_b32 v44, 2, v41")
    a("v_or_b32 v43, v43, v44")
    a("v_lshrrev_b32 v44, 5, %s" % vr(L))
    a("v_xor_b32 v45, v44, v43")
    a("v_lshlrev_b32 v45, 4, v45")
    a("v_and_b32 v46, 31, %s" % vr(L))
    a("v_lshl_add_u32 %s, v46, 8, v45" % vr(V_QA0))
    a("v_add_u32 %s, %s, %s" % (vr(V_KA), sr(S_RING), vr(V_QA0)))
    a("v_lshlrev_b32 %s, 13, v46" % vr(V_OVOFF))
    a("v_lshl_add_u32 %s, v44, 4, %s" % (vr(V_OVOFF), vr(V_OVOFF)))
    a("s_lshl_b32 %s, %s, 5" % (sr(S_TMP), sr(S_WAVE)))
    a("v_add_u32 %s, %s, %s" % (vr(V_OVOFF), sr(S_TMP), vr(V_OVOFF)))
    a("v_lshrrev_b32 v45, 2, v41")
    a("v_and_b32 v46, 1, v40")
    a("v_and_b32 v47, 1, v41")
    a("v_lshl_add_u32 v47, v46, 1, v47")
    a("v_xor_b32 v47, v47, v44")
    a("v_lshl_add_u32 v47, v45, 2, v47")
    a("v_lshlrev_b32 v47, 4, v47")
    a("v_bfe_u32 v46, v41, 1, 1")
    a("v_lshl_add_u32 v47, v46, 3, v47")
    a("v_lshl_add_u32 v45, v44, 2, v45")
    a("v_lshl_add_u32 v47, v45, 8, v47")
    a("v_add_u32 %s, %s, v47" % (vr(V_VA), sr(S_M0V)))

    VW, VX = 32, 28 + 4 + 8
    a("v_lshlrev_b32 v48, 3, v41")
    a("v_lshl_add_u32 v48, v40, 16, v48")
    for j in range(8):
        a("v_add_u32 %s, %d, v48" % (vr(VW + j), j * 8192))
    a("v_lshlrev_b32 v49, 1, v40")
    a("s_lshl_b32 %s, s47, 3" % sr(S_TMP))
    a("v_add_u32 v49, %s, v49" % sr(S_TMP))
    a("v_xor_b32 v49, v49, v43")
    a("v_lshlrev_b32 v49, 4, v49")
    a("v_lshl_add_u32 v49, v41, 8, v49")
    a("s_lshl_b32 %s, s46, 14" % sr(S_TMP))
    a("s_add_u32 %s, %s, %d" % (sr(S_TMP), sr(S_TMP), SCR))
    a("v_add_u32 v29, %s, v49" % sr(S_TMP))
    a("v_xor_b32 v30, 16, v29")
    a("v_lshlrev_b32 v49, 4, v40")
    a("v_lshl_add_u32 v49, v41, 10, v49")
    for qq in range(4):
        a("v_add_u32 %s, %d, v49" % (vr(VX + qq), qq * 16384))

    dmas = []
    for u in range(4):
        srd = S_K if u % 2 == 0 else S_V
        for g in range(2):
            for n in range(4):
                pre = []
                if n % 2 == 0:
                    pre.append("s_add_u32 m0, %s, %d" % (sr(S_RING), u * 8192 + g * 4096))
                    pre.append("s_add_u32 %s, %s, %d" % (sr(S_TMP), sr(S_PF), (u // 2) * 32768 + g * 4096))
                dmas.append((pre, "buffer_load_dwordx4 %s, %s, %s offen offset:%d%s lds" % (
                    vr(V_DMA + n), sr(srd, 4), sr(S_TMP), n * 1024, " nt" if OPT["nt"] else "")))

    def extra(ks):
        for pre, ld in dmas[2 * ks:2 * ks + 2]:
            for p in pre:
                a(p)
            a.vmem(ld)

    V_RAW, V_XF, V_AF, V_ACC = 64, 128, 48, 192
    gemm_direct(a, 4, 16, 4, VW, VX, V_RAW, V_XF, V_AF, V_ACC, S_X, S_W, S_XOFF, S_WOFF, 32 * 8192, extra)
    a("s_add_u32 %s, %s, 65536" % (sr(S_PF), sr(S_PF)))
    a("s_nop 7")
    for qq in range(4):
        for r in range(4):
            for ih in range(2):
                a("v_cvt_pk_bf16_f32 %s, %s, %s" % (vr(64 + qq * 8 + 2 * r + ih),
                                                   vr(V_ACC + ((2 * ih) * 4 + qq) * 4 + r), vr(V_ACC + ((2 * ih + 1) * 4 + qq) * 4 + r)))
        a("ds_write_b128 v29, %s offset:%d" % (vr(64 + qq * 8, 4), qq * 4096))
        a("ds_write_b128 v30, %s offset:%d" % (vr(64 + qq * 8 + 4, 4), qq * 4096))
    a("s_waitcnt lgkmcnt(0)")
    a("s_barrier")
    a("v_add_u32 v29, %d, %s" % (SCR, vr(V_QA0)))
    cnt = 0
    for s in range(8):
        if s:
            a("v_xor_b32 v30, %d, v29" % (32 * s))
        for qb in range(4):
            a("ds_read_b128 %s, %s offset:%d" % (vr(V_Q + (qb * 8 + s) * 4, 4), "v30" if s else "v29", qb * 8192))
        if s % 2 == 1:
            a("s_waitcnt lgkmcnt(4)")
    a("s_waitcnt lgkmcnt(0)")
    a("s_barrier")
    a("s_cmp_eq_u32 %s, 1" % sr(S_TYPE))
    a("s_cbranch_scc1 L_typeA")

    init_pass(a, 2)
    tile_loop(a, 2, "b")
    a("s_nop 0")
    combine(a, 0, S_OOFF0, oneshot=False)
    for r in range(64):
        a("v_mov_b32 %s, %s" % (vr(V_Q + r), vr(V_Q + 64 + r)))
    init_pass(a, 2)
    tile_loop(a, 2, "c")
    combine(a, 0, S_OOFF1, oneshot=True)
    a("s_endpgm")
    slow_path(a, 0, 0, "b0")
    slow_path(a, 1, 64, "b1")
    slow_path(a, 0, 0, "c0")
    slow_path(a, 1, 64, "c1")

    a.label("L_typeA")
    init_pass(a, 4)
    tile_loop(a, 4, "a")
    combine(a, 0, S_OOFF0, oneshot=True)
    combine(a, 2, S_OOFF1, oneshot=True)
    a.label("L_end1")
    a("s_endpgm")
    for j in range(4):
        slow_path(a, j, 64 * j, "a%d" % j)


def kernel2(a):
    a.label("oproj_kernel")
    a("s_cmp_ge_u32 s2, 256")
    a("s_cbranch_scc1 L_end2")
    a("s_load_dwordx2 s[48:49], s[0:1], 32")
    a("s_load_dwordx2 s[50:51], s[0:1], 72")
    a("s_load_dwordx2 s[52:53], s[0:1], 80")
    a("s_load_dwordx2 s[54:55], s[0:1], 96")
    a("v_lshrrev_b32 v1, 6, v0")
    a("v_and_b32 v0, 63, v0")
    a("v_readfirstlane_b32 %s, v1" % sr(S_WAVE))
    a("s_and_b32 s3, s2, 7")
    a("s_lshr_b32 s45, s2, 3")
    a("s_lshr_b32 s46, s3, 2")
    a("s_and_b32 s47, s3, 1")
    a("s_lshl_b32 s47, s47, 2")
    a("s_and_b32 s56, s45, 3")
    a("s_add_u32 s47, s47, s56")
    a("s_bfe_u32 s56, s3, 0x10001")
    a("s_lshl_b32 s56, s56, 3")
    a("s_lshr_b32 s57, s45, 2")
    a("s_add_u32 s56, s56, s57")
    a("s_mov_b32 %s, 0x%08x" % (sr(S_SELLO), SEL_LO))
    a("s_mov_b32 %s, 0x%08x" % (sr(S_SELHI), SEL_HI))
    a("s_waitcnt lgkmcnt(0)")
    a("s_cmp_eq_u32 s46, 0")
    a("s_cselect_b32 %s, s48, s50" % sr(S_W))
    a("s_cselect_b32 %s, s49, s51" % sr(S_W + 1))
    a("s_mov_b32 %s, 4194304" % sr(S_W + 2))
    a("s_mov_b32 %s, 0x00020000" % sr(S_W + 3))
    a("s_mov_b32 %s, s54" % sr(S_X))
    a("s_mov_b32 %s, s55" % sr(S_X + 1))
    a("s_mov_b32 %s, %d" % (sr(S_X + 2), 8 << 20))
    a("s_mov_b32 %s, 0x00020000" % sr(S_X + 3))
    a("s_mov_b32 %s, s52" % sr(S_O))
    a("s_mov_b32 %s, s53" % sr(S_O + 1))
    a("s_mov_b32 %s, 1048576" % sr(S_O + 2))
    a("s_mov_b32 %s, 0x00020000" % sr(S_O + 3))
    a("s_lshl_b32 %s, s46, 22" % sr(S_XOFF))
    a("s_lshl_b32 s57, s47, 19")
    a("s_add_u32 %s, %s, s57" % (sr(S_XOFF), sr(S_XOFF)))
    a("s_lshl_b32 s57, %s, 11" % sr(S_WAVE))
    a("s_add_u32 %s, %s, s57" % (sr(S_XOFF), sr(S_XOFF)))
    a("s_lshl_b32 %s, %s, 20" % (sr(S_WOFF), sr(S_WAVE)))
    a("s_lshl_b32 s57, s56, 6")
    a("s_add_u32 %s, %s, s57" % (sr(S_WOFF), sr(S_WOFF)))
    a("v_lshrrev_b32 v2, 4, v0")
    a("v_and_b32 v3, 15, v0")
    VW, VX = 8, 16
    a("v_lshlrev_b32 v4, 2, v3")
    a("v_lshl_add_u32 v4, v2, 13, v4")
    for j in range(8):
        a("v_add_u32 %s, %d, v4" % (vr(VW + j), j * 1024))
    a("v_lshlrev_b32 v4, 4, v2")
    a("v_lshl_add_u32 v4, v3, 13, v4")
    for qq in range(4):
        a("v_add_u32 %s, %d, v4" % (vr(VX + qq), qq * 131072))
    V_AF, V_ACC, V_RAW, V_XF = 24, 32, 64, 96
    gemm_direct(a, 2, 32, 4, VW, VX, V_RAW, V_XF, V_AF, V_ACC, S_X, S_W, S_XOFF, S_WOFF, 32 * 1024)
    a("s_nop 7")
    a("v_lshlrev_b32 v5, 4, v0")
    a("s_lshl_b32 s57, %s, 13" % sr(S_WAVE))
    a("v_add_u32 v6, s57, v5")
    for k in range(8):
        a("ds_write_b128 v6, %s offset:%d" % (vr(V_ACC + 4 * k, 4), k * 1024))
    a("s_waitcnt lgkmcnt(0)")
    a("s_barrier")
    a("s_lshl_b32 s57, %s, 10" % sr(S_WAVE))
    a("v_add_u32 v6, s57, v5")
    for w in range(4):
        for i in range(2):
            a("ds_read_b128 %s, v6 offset:%d" % (vr(64 + (w * 2 + i) * 4, 4), w * 8192 + i * 4096))
    a("s_waitcnt lgkmcnt(0)")
    for e in range(8):
        a("v_add_f32 %s, %s, %s" % (vr(64 + e), vr(64 + e), vr(72 + e)))
        a("v_add_f32 %s, %s, %s" % (vr(80 + e), vr(80 + e), vr(88 + e)))
    for e in range(8):
        a("v_add_f32 %s, %s, %s" % (vr(64 + e), vr(64 + e), vr(80 + e)))
    for r in range(4):
        a("v_cvt_pk_bf16_f32 %s, %s, %s" % (vr(96 + r), vr(64 + r), vr(68 + r)))
    a("v_lshlrev_b32 v4, 4, v2")
    a("v_lshl_add_u32 v4, v3, 11, v4")
    a("s_lshl_b32 s57, s47, 17")
    a("s_lshl_b32 s58, %s, 15" % sr(S_WAVE))
    a("s_add_u32 s57, s57, s58")
    a("s_lshl_b32 s58, s46, 10")
    a("s_add_u32 s57, s57, s58")
    a("s_lshl_b32 s58, s56, 6")
    a("s_add_u32 s57, s57, s58")
    a("buffer_store_dwordx4 v[96:99], v4, %s, s57 offen" % sr(S_O, 4))
    a.label("L_end2")
    a("s_endpgm")


def descriptor(name, vgpr, accum, sgpr=102):
    return """.amdhsa_kernel %s
  .amdhsa_next_free_vgpr %d
  .amdhsa_next_free_sgpr %d
  .amdhsa_accum_offset %d
  .amdhsa_group_segment_fixed_size 0
  .amdhsa_kernarg_size 104
  .amdhsa_user_sgpr_count 2
  .amdhsa_user_sgpr_kernarg_segment_ptr 1
  .amdhsa_system_sgpr_workgroup_id_x 1
.end_amdhsa_kernel
""" % (name, vgpr, sgpr, accum)


def main():
    out = HEADER
    out += "; @launch kernel=attn_kernel grid=(256,1,1) block=(256,1,1) lds=%d\n" % LDS1
    if OPT["k2"]:
        out += "; @launch kernel=oproj_kernel grid=(256,1,1) block=(256,1,1) lds=32768\n"
    out += '.amdgcn_target "amdgcn-amd-amdhsa--gfx950"\n.text\n'
    a = Asm()
    out += ".globl attn_kernel\n.p2align 8\n.type attn_kernel,@function\n"
    kernel1(a)
    out += a.text()
    a = Asm()
    out += ".globl oproj_kernel\n.p2align 8\n.type oproj_kernel,@function\n"
    kernel2(a)
    out += a.text()
    out += '.section .rodata,"a"\n.p2align 6\n'
    out += descriptor("attn_kernel", 512, 256)
    out += ".p2align 6\n"
    out += descriptor("oproj_kernel", 160, 160)
    open(sys.argv[1], "w").write(out)


main()
```

```python
import math, sys

NAME = "concat_heads__gqa_block_cached__mha_block_cached__near_ridge"

HEADER = """; Kernarg layout for this problem (104 bytes, ptrs only, base s[0:1]):
"""

OPT = dict(nt=0, nocompute=0, k2=1, stamp=0)
for arg in sys.argv[2:]:
    k, v = arg.split("=")
    OPT[k] = int(v)


def f32hex(x):
    import struct
    return "0x%08x" % struct.unpack("<I", struct.pack("<f", x))[0]


class Asm:
    def __init__(self):
        self.lines = []
        self.vm = 0
        self.uid = 0

    def __call__(self, s):
        self.lines.append("    " + s)

    def label(self, l):
        self.lines.append(l + ":")

    def c(self, s):
        self.lines.append("    ; " + s)

    def vmem(self, s):
        self(s)
        self.vm += 1
        return self.vm - 1

    def wait_vm(self, idx):
        n = self.vm - idx - 1
        assert 0 <= n <= 63, n
        self("s_waitcnt vmcnt(%d)" % n)

    def text(self):
        return "\n".join(self.lines) + "\n"


def vr(b, n=1):
    return "v%d" % b if n == 1 else "v[%d:%d]" % (b, b + n - 1)


def ar(b, n=1):
    return "a%d" % b if n == 1 else "a[%d:%d]" % (b, b + n - 1)


def sr(b, n=1):
    return "s%d" % b if n == 1 else "s[%d:%d]" % (b, b + n - 1)


def interleave(a, mfmas, fillers, lead=0):
    n = len(mfmas)
    gaps = n - lead
    done = 0
    for i, m in enumerate(mfmas):
        a(m)
        if i >= lead and gaps > 0:
            want = (len(fillers) * (i - lead + 1) + gaps - 1) // gaps
            while done < want:
                emit(a, fillers[done])
                done += 1
    while done < len(fillers):
        emit(a, fillers[done])
        done += 1


def emit(a, f):
    if f.endswith(":"):
        a.label(f[:-1])
    else:
        a(f)


SCALE = 128 ** -0.5
CEXP = SCALE * math.log2(math.e)
TLAZY = 8.0
RING = 32768
SCR = 131072
LDS1 = 163840
ITEM_JUMP = 4 * 32 * 262144 - 262144
SEL_LO = 0x05040100
SEL_HI = 0x07060302

S_K, S_V, S_X, S_W, S_O = 4, 8, 12, 16, 20
S_WAVE, S_TYPE, S_PF, S_T, S_RING = 24, 25, 26, 27, 28
S_XOFF, S_WOFF, S_C, S_SELLO, S_SELHI = 29, 30, 31, 32, 33
S_OOFF0, S_OOFF1, S_PASS, S_TMP, S_TMP2, S_M0K, S_M0V, S_FIRST = 34, 35, 36, 37, 38, 39, 40, 41
S_T8, S_JUMP, S_OOFF = 42, 43, 44
S_P = 48

V_LANE, V_KA, V_VA, V_TA, V_TB = 0, 1, 2, 3, 4
V_DMA = 5
V_MC = 9
V_L = 13
V_TMAX = 17
V_T0 = 18
V_OVOFF = 26
V_L16 = 27
V_QA0 = 28
V_VF = 32
V_KF = 64
V_S = 96
V_Q = 128


def gemm_direct(a, NC, KS, DEPTH, v_w, v_x, v_raw, v_xf, v_af, v_acc, srd_x, srd_w, s_xoff, s_woff,
                wstep, extra=None, ldflags=""):
    RW = NC // 2
    ldw = "buffer_load_dword" if RW == 1 else "buffer_load_dwordx2"
    last = {}

    def issue(ks):
        st = ks % DEPTH
        for j in range(8):
            a.vmem("%s %s, %s, %s, %s offen" % (ldw, vr(v_raw + (st * 8 + j) * RW, RW), vr(v_w + j), sr(srd_w, 4), sr(s_woff)))
        for qq in range(4):
            idx = a.vmem("buffer_load_dwordx4 %s, %s, %s, %s offen offset:%d%s" % (
                vr(v_xf + st * 16 + qq * 4, 4), vr(v_x + qq), sr(srd_x, 4), sr(s_xoff), 64 * ks, ldflags))
        last[ks] = idx
        a("s_add_u32 %s, %s, %d" % (sr(s_woff), sr(s_woff), wstep))
        if extra:
            extra(ks)

    for ks in range(min(DEPTH, KS)):
        issue(ks)
    for ks in range(KS):
        st = ks % DEPTH
        a.wait_vm(last[ks])
        for i in range(NC):
            w, e = i >> 1, i & 1
            for t in range(4):
                r0 = v_raw + (st * 8 + 2 * t) * RW + w
                r1 = v_raw + (st * 8 + 2 * t + 1) * RW + w
                a("v_perm_b32 %s, %s, %s, %s" % (vr(v_af + i * 4 + t), vr(r1), vr(r0), sr(S_SELHI if e else S_SELLO)))
        a("s_nop 1")
        for i in range(NC):
            for qq in range(4):
                acc = vr(v_acc + (i * 4 + qq) * 4, 4)
                a("v_mfma_f32_16x16x32_bf16 %s, %s, %s, %s" % (acc, vr(v_af + i * 4, 4), vr(v_xf + st * 16 + qq * 4, 4),
                                                              "0" if ks == 0 else acc))
        if ks + DEPTH < KS:
            issue(ks + DEPTH)


def dma_unit(a, srd, s_m0_base, slot_imm, s_goff, lst=None):
    out = []
    nt = " nt" if OPT["nt"] else ""
    for g in range(2):
        if g == 0:
            out.append("s_mov_b32 m0, %s" % sr(s_m0_base))
            out.append("s_mov_b32 %s, %s" % (sr(S_TMP), sr(s_goff)))
        else:
            out.append("s_add_u32 m0, %s, 4096" % sr(s_m0_base))
            out.append("s_add_u32 %s, %s, 4096" % (sr(S_TMP), sr(s_goff)))
        for n in range(4):
            out.append("buffer_load_dwordx4 %s, %s, %s offen offset:%d%s lds" % (vr(V_DMA + n), sr(srd, 4), sr(S_TMP), n * 1024, nt))
    return out


def softmax_ops(j, sb, tag):
    f = []
    t0, t1, t2, t3, t4 = V_T0, V_T0 + 1, V_T0 + 2, V_T0 + 3, V_T0 + 4
    s = lambda i: vr(sb + i)
    f.append("v_max3_f32 %s, %s, %s, %s" % (vr(t0), s(0), s(1), s(2)))
    f.append("v_max3_f32 %s, %s, %s, %s" % (vr(t1), s(3), s(4), s(5)))
    f.append("v_max3_f32 %s, %s, %s, %s" % (vr(t2), s(6), s(7), s(8)))
    f.append("v_max3_f32 %s, %s, %s, %s" % (vr(t3), s(9), s(10), s(11)))
    f.append("v_max3_f32 %s, %s, %s, %s" % (vr(t4), s(12), s(13), s(14)))
    f.append("v_max3_f32 %s, %s, %s, %s" % (vr(t0), vr(t0), vr(t1), s(15)))
    f.append("v_max3_f32 %s, %s, %s, %s" % (vr(t2), vr(t2), vr(t3), vr(t4)))
    f.append("v_max_f32 %s, %s, %s" % (vr(V_TMAX), vr(t0), vr(t2)))
    f.append("v_fma_f32 %s, %s, %s, -%s" % (vr(t0), vr(V_TMAX), sr(S_C), vr(V_MC + j)))
    f.append("v_cmp_lt_f32 vcc, %s, %s" % (sr(S_T8), vr(t0)))
    f.append("s_cbranch_vccnz L_slow_%s" % tag)
    f.append("L_back_%s:" % tag)
    for i in range(16):
        f.append("v_fma_f32 %s, %s, %s, -%s" % (s(i), s(i), sr(S_C), vr(V_MC + j)))
        if i >= 1:
            f.append("v_exp_f32 %s, %s" % (s(i - 1), s(i - 1)))
        if i >= 3:
            f.append("v_add_f32 %s, %s, %s" % (vr(V_L + j), vr(V_L + j), s(i - 3)))
        if i >= 4 and i % 2 == 0:
            p = (i - 4) // 2
            f.append("v_cvt_pk_bf16_f32 %s, %s, %s" % (s(p), s(2 * p), s(2 * p + 1)))
    f.append("v_exp_f32 %s, %s" % (s(15), s(15)))
    f.append("v_add_f32 %s, %s, %s" % (vr(V_L + j), vr(V_L + j), s(13)))
    f.append("v_cvt_pk_bf16_f32 %s, %s, %s" % (s(6), s(12), s(13)))
    f.append("v_add_f32 %s, %s, %s" % (vr(V_L + j), vr(V_L + j), s(14)))
    f.append("v_add_f32 %s, %s, %s" % (vr(V_L + j), vr(V_L + j), s(15)))
    f.append("v_cvt_pk_bf16_f32 %s, %s, %s" % (s(7), s(14), s(15)))
    return f


def check_softmax_order():
    pass


def slow_path(a, j, obase, tag):
    if OPT["nocompute"]:
        return
    t0, t1, t2 = V_T0, V_T0 + 1, V_T0 + 2
    a.label("L_slow_%s" % tag)
    a("v_mov_b32 %s, %s" % (vr(t0), vr(V_TMAX)))
    a("v_mov_b32 %s, %s" % (vr(t1), vr(V_TMAX)))
    a("s_nop 1")
    a("v_permlane32_swap_b32 %s, %s" % (vr(t0), vr(t1)))
    a("s_nop 1")
    a("v_max_f32 %s, %s, %s" % (vr(t0), vr(t0), vr(t1)))
    a("v_mul_f32 %s, %s, %s" % (vr(t0), sr(S_C), vr(t0)))
    a("v_max_f32 %s, %s, %s" % (vr(t0), vr(t0), vr(V_MC + j)))
    a("v_sub_f32 %s, %s, %s" % (vr(t1), vr(V_MC + j), vr(t0)))
    a("v_exp_f32 %s, %s" % (vr(t1), vr(t1)))
    a("v_mov_b32 %s, %s" % (vr(V_MC + j), vr(t0)))
    a("v_mul_f32 %s, %s, %s" % (vr(V_L + j), vr(V_L + j), vr(t1)))
    a("s_cmp_eq_u32 %s, 0" % sr(S_T))
    a("s_cbranch_scc1 L_back_%s" % tag)
    a("s_nop 7")
    a("s_nop 7")
    for r in range(0, 64, 4):
        for q in range(4):
            a("v_accvgpr_read_b32 %s, %s" % (vr(t2 + q), ar(obase + r + q)))
        for q in range(4):
            a("v_mul_f32 %s, %s, %s" % (vr(t2 + q), vr(t2 + q), vr(t1)))
        for q in range(4):
            a("v_accvgpr_write_b32 %s, %s" % (ar(obase + r + q), vr(t2 + q)))
    a("s_nop 1")
    a("s_branch L_back_%s" % tag)


def qk_mfmas(j, sb):
    out = []
    for s in range(8):
        d = vr(sb, 16)
        out.append("v_mfma_f32_32x32x16_bf16 %s, %s, %s, %s" % (d, vr(V_KF + 4 * s, 4), vr(V_Q + (j * 8 + s) * 4, 4), "0" if s == 0 else d))
    return out


def pv_mfmas(j, sb):
    out = []
    for ks in range(2):
        for db in range(4):
            o = ar(j * 64 + db * 16, 16)
            out.append("v_mfma_f32_32x32x16_bf16 %s, %s, %s, %s" % (o, vr(V_VF + (db * 2 + ks) * 4, 4), vr(sb + 4 * ks, 4), o))
    return out


def tile_loop(a, NQB, tag):
    a("s_mov_b32 %s, 0" % sr(S_T))
    a.label("L_tile_%s" % tag)
    a("s_waitcnt vmcnt(24)")
    for s in range(8):
        ta = V_TA if s % 2 == 0 else V_TB
        if s == 0:
            a("ds_read_b128 %s, %s" % (vr(V_KF, 4), vr(V_KA)))
        else:
            a("v_xor_b32 %s, %d, %s" % (vr(ta), 32 * s, vr(V_KA)))
            a("ds_read_b128 %s, %s" % (vr(V_KF + 4 * s, 4), vr(ta)))
    nocomp = OPT["nocompute"]
    m = qk_mfmas(0, V_S)
    for s in range(8):
        a("s_waitcnt lgkmcnt(%d)" % (7 - s))
        if not nocomp:
            a(m[s])
    for x in dma_unit(a, S_K, S_M0K, 0, S_PF):
        a(x)
    a("s_waitcnt vmcnt(24)")
    vreads = []
    k = 0
    for db in range(4):
        for hr in range(2):
            ta = V_TA if k % 2 == 0 else V_TB
            k += 1
            x = db * 64 + hr * 32
            if x:
                vreads.append("v_xor_b32 %s, %d, %s" % (vr(ta), x, vr(V_VA)))
                ad = ta
            else:
                ad = V_VA
            for ks in range(2):
                vreads.append("ds_read_b64_tr_b16 %s, %s offset:%d" % (vr(V_VF + (db * 2 + ks) * 4 + 2 * hr, 2), vr(ad), ks * 4096 + hr * 2048))
    half = len(vreads) // 2
    for x in vreads[:half + 1]:
        a(x)
    vreads = vreads[:half + 1] + vreads[half + 1:half + 4] + ["s_waitcnt lgkmcnt(6)"] + vreads[half + 4:]
    post_v = ["s_waitcnt lgkmcnt(0)"] + dma_unit(a, S_V, S_M0V, 0, S_PF) + [
        "s_add_u32 %s, %s, 32768" % (sr(S_PF), sr(S_PF)),
        "s_add_u32 %s, %s, 1" % (sr(S_T), sr(S_T)),
        "s_cmp_eq_u32 %s, 6" % sr(S_T),
        "s_cselect_b32 %s, %s, 0" % (sr(S_TMP2), sr(S_JUMP)),
        "s_add_u32 %s, %s, %s" % (sr(S_PF), sr(S_PF), sr(S_TMP2)),
        "s_xor_b32 %s, %s, 16384" % (sr(S_M0K), sr(S_M0K)),
        "s_xor_b32 %s, %s, 16384" % (sr(S_M0V), sr(S_M0V)),
        "v_xor_b32 %s, 16384, %s" % (vr(V_KA), vr(V_KA)),
        "v_xor_b32 %s, 16384, %s" % (vr(V_VA), vr(V_VA)),
    ]
    if nocomp:
        for x in vreads[half + 1:] + post_v:
            a(x)
    else:
        SB = lambda j: V_S + 16 * (j & 1)
        dma_part = post_v[:-9]
        tail_part = post_v[-9:]
        interleave(a, qk_mfmas(1, SB(1)), vreads[half + 1:] + softmax_ops(0, SB(0), tag + "0"))
        if NQB == 2:
            for x in dma_part[:1]:
                a(x)
            a("s_nop 1")
            interleave(a, pv_mfmas(0, SB(0)), ["s_nop 3"] + dma_part[1:] + softmax_ops(1, SB(1), tag + "1"))
            a("s_nop 1")
            interleave(a, pv_mfmas(1, SB(1)), tail_part)
        else:
            for x in dma_part[:1]:
                a(x)
            a("s_nop 1")
            interleave(a, pv_mfmas(0, SB(0)) + qk_mfmas(2, SB(2)), ["s_nop 3"] + dma_part[1:] + softmax_ops(1, SB(1), tag + "1"))
            a("s_nop 1")
            interleave(a, pv_mfmas(1, SB(1)) + qk_mfmas(3, SB(3)), ["s_nop 7", "s_nop 3"] + softmax_ops(2, SB(2), tag + "2"))
            a("s_nop 1")
            interleave(a, pv_mfmas(2, SB(2)), ["s_nop 7", "s_nop 3"] + softmax_ops(3, SB(3), tag + "3"))
            a("s_nop 1")
            interleave(a, pv_mfmas(3, SB(3)), tail_part)
    a("s_cmp_lt_u32 %s, 8" % sr(S_T))
    a("s_cbranch_scc1 L_tile_%s" % tag)


def stamp(a, idx, srd=None, base=0):
    if not OPT["stamp"]:
        return
    a("s_memrealtime s[90:91]")
    a("s_waitcnt lgkmcnt(0)")
    a("s_lshl_b32 s92, s2, 2")
    a("s_add_u32 s92, s92, %s" % sr(S_WAVE))
    a("s_lshl_b32 s92, s92, 6")
    a("s_add_u32 s92, s92, %d" % ((16 << 20) + base + idx * 4))
    a("v_mov_b32 v31, s90")
    a("v_mov_b32 v30, 0")
    a("buffer_store_dword v31, v30, s[96:99], s92 offen")
    a.vm += 1


def stamp_srd(a, lo, hi):
    if not OPT["stamp"]:
        return
    a("s_mov_b32 s96, %s" % lo)
    a("s_mov_b32 s97, %s" % hi)
    a("s_mov_b32 s98, %d" % (32 << 20))
    a("s_mov_b32 s99, 0x00020000")


def init_pass(a, NQB):
    for j in range(NQB):
        a("v_mov_b32 %s, %s" % (vr(V_MC + j), f32hex(-1e30)))
        a("v_mov_b32 %s, 0" % vr(V_L + j))
    for r in range(NQB * 64):
        a("v_accvgpr_write_b32 %s, 0" % ar(r))


def combine(a, j0, s_ooff, oneshot):
    t = V_T0
    F = 32
    RB = 64
    OUT = 96
    AD = 40
    a.c("combine: stats")
    a("s_nop 7")
    a("s_nop 7")
    for jj in range(2):
        j = j0 + jj
        a("v_mov_b32 %s, %s" % (vr(t), vr(V_L + j)))
        a("v_mov_b32 %s, %s" % (vr(t + 1), vr(V_L + j)))
        a("s_nop 1")
        a("v_permlane32_swap_b32 %s, %s" % (vr(t), vr(t + 1)))
        a("s_nop 1")
        a("v_add_f32 %s, %s, %s" % (vr(t + 3 + 2 * jj), vr(t), vr(t + 1)))
        a("v_mov_b32 %s, %s" % (vr(t + 2 + 2 * jj), vr(V_MC + j)))
    a("s_lshl_b32 %s, %s, 10" % (sr(S_TMP), sr(S_WAVE)))
    a("s_add_u32 %s, %s, %d" % (sr(S_TMP), sr(S_TMP), SCR))
    a("v_lshlrev_b32 %s, 3, %s" % (vr(AD), vr(V_LANE)))
    a("v_add_u32 %s, %s, %s" % (vr(AD + 1), sr(S_TMP), vr(AD)))
    a("ds_write_b64 %s, %s" % (vr(AD + 1), vr(t + 2, 2)))
    a("ds_write_b64 %s, %s offset:512" % (vr(AD + 1), vr(t + 4, 2)))

    def write_round(rho, vaddr, imm):
        jj, dp = rho >> 1, rho & 1
        for blk in range(2):
            for q in range(4):
                a("ds_write_b128 %s, %s offset:%d" % (vr(vaddr), ar((j0 + jj) * 64 + (2 * dp + blk) * 16 + 4 * q, 4), imm + (blk * 4 + q) * 1024))

    def read_stats():
        a("v_add_u32 %s, %d, %s" % (vr(AD + 1), SCR, vr(AD)))
        for jj in range(2):
            for w in range(4):
                a("ds_read_b64 %s, %s offset:%d" % (vr(RB + (jj * 4 + w) * 2, 2), vr(AD + 1), (w * 2 + jj) * 512))
        a("s_waitcnt lgkmcnt(0)")
        for jj in range(2):
            m = lambda w: vr(RB + (jj * 4 + w) * 2)
            l = lambda w: vr(RB + (jj * 4 + w) * 2 + 1)
            a("v_max3_f32 %s, %s, %s, %s" % (vr(t), m(0), m(1), m(2)))
            a("v_max_f32 %s, %s, %s" % (vr(t), vr(t), m(3)))
            for w in range(4):
                a("v_sub_f32 %s, %s, %s" % (vr(F + jj * 4 + w), m(w), vr(t)))
            for w in range(4):
                a("v_exp_f32 %s, %s" % (vr(F + jj * 4 + w), vr(F + jj * 4 + w)))
            a("s_nop 0")
            a("v_mul_f32 %s, %s, %s" % (vr(t + 1), vr(F + jj * 4), l(0)))
            for w in range(1, 4):
                a("v_fmac_f32 %s, %s, %s" % (vr(t + 1), vr(F + jj * 4 + w), l(w)))
            a("v_rcp_f32 %s, %s" % (vr(t + 1), vr(t + 1)))
            a("s_nop 0")
            for w in range(4):
                a("v_mul_f32 %s, %s, %s" % (vr(F + jj * 4 + w), vr(F + jj * 4 + w), vr(t + 1)))

    def reduce_round(rho, vaddr, wstride, imm):
        jj, dp = rho >> 1, rho & 1
        for w in range(4):
            for q in range(2):
                off = imm + w * wstride + q * 1024
                if off < 65536:
                    a("ds_read_b128 %s, %s offset:%d" % (vr(RB + (w * 2 + q) * 4, 4), vr(vaddr), off))
                else:
                    a("ds_read_b128 %s, %s offset:%d" % (vr(RB + (w * 2 + q) * 4, 4), vr(vaddr + 1), off - 65536))
        for w in range(4):
            a("s_waitcnt lgkmcnt(%d)" % (6 - 2 * w))
            for e in range(8):
                if w == 0:
                    a("v_mul_f32 %s, %s, %s" % (vr(OUT + e), vr(F + jj * 4), vr(RB + e)))
                else:
                    a("v_fmac_f32 %s, %s, %s" % (vr(OUT + e), vr(F + jj * 4 + w), vr(RB + w * 8 + e)))
        o4 = OUT + 8 + 4 * (rho & 1)
        for e in range(4):
            a("v_cvt_pk_bf16_f32 %s, %s, %s" % (vr(o4 + e), vr(OUT + 2 * e), vr(OUT + 2 * e + 1)))
        if jj == 1:
            a("s_add_u32 %s, %s, 262144" % (sr(S_TMP), sr(s_ooff)))
            so = S_TMP
        else:
            so = s_ooff
        a("buffer_store_dwordx4 %s, %s, %s, %s offen offset:%d" % (vr(o4, 4), vr(V_OVOFF), sr(S_O, 4), sr(so), dp * 128))

    a("s_lshl_b32 %s, %s, 11" % (sr(S_TMP2), sr(S_WAVE)))
    if oneshot:
        a("s_waitcnt vmcnt(0)")
        a("v_add_u32 %s, %s, %s" % (vr(AD + 2), sr(S_RING), vr(V_L16)))
        for rho in range(4):
            write_round(rho, AD + 2, rho * 8192)
        a("s_waitcnt lgkmcnt(0)")
        a("s_barrier")
        read_stats()
        a("v_add_u32 %s, %s, %s" % (vr(AD + 4), sr(S_TMP2), vr(V_L16)))
        a("v_add_u32 %s, 65536, %s" % (vr(AD + 5), vr(AD + 4)))
        for rho in range(4):
            reduce_round(rho, AD + 4, RING, rho * 8192)
        a("s_barrier")
    else:
        a("s_waitcnt lgkmcnt(0)")
        a("s_barrier")
        read_stats()
        a("s_barrier")
        a("s_lshl_b32 %s, %s, 13" % (sr(S_TMP), sr(S_WAVE)))
        a("s_add_u32 %s, %s, %d" % (sr(S_TMP), sr(S_TMP), SCR))
        a("v_add_u32 %s, %s, %s" % (vr(AD + 2), sr(S_TMP), vr(V_L16)))
        a("s_add_u32 %s, %s, %d" % (sr(S_TMP2), sr(S_TMP2), SCR))
        a("v_add_u32 %s, %s, %s" % (vr(AD + 4), sr(S_TMP2), vr(V_L16)))
        for rho in range(4):
            write_round(rho, AD + 2, 0)
            a("s_waitcnt lgkmcnt(0)")
            a("s_barrier")
            reduce_round(rho, AD + 4, 8192, 0)
            a("s_barrier")


def kernel1(a):
    a.label("attn_kernel")
    a("s_cmp_ge_u32 s2, 256")
    a("s_cbranch_scc1 L_end1")
    a("s_load_dwordx16 %s, s[0:1], 0" % sr(S_P, 16))
    a("s_load_dwordx2 %s, s[0:1], 64" % sr(S_P + 16, 2))
    a("s_load_dwordx2 %s, s[0:1], 96" % sr(S_P + 18, 2))
    a("v_lshrrev_b32 v1, 6, v0")
    a("v_and_b32 %s, 63, v0" % vr(V_LANE))
    a("v_readfirstlane_b32 %s, v1" % sr(S_WAVE))
    a("s_and_b32 s3, s2, 7")
    a("s_lshr_b32 s45, s2, 3")
    a("s_cmp_ge_u32 s45, 16")
    a("s_cselect_b32 %s, 1, 0" % sr(S_TYPE))
    a("s_mov_b32 %s, %s" % (sr(S_C), f32hex(CEXP)))
    a("s_mov_b32 %s, 0x%08x" % (sr(S_SELLO), SEL_LO))
    a("s_mov_b32 %s, 0x%08x" % (sr(S_SELHI), SEL_HI))
    a("s_mov_b32 %s, %s" % (sr(S_T8), f32hex(TLAZY)))
    a("s_mov_b32 %s, %d" % (sr(S_JUMP), ITEM_JUMP))
    a("s_lshr_b32 s46, %s, 1" % sr(S_WAVE))
    a("s_and_b32 s47, %s, 1" % sr(S_WAVE))
    a("s_lshl_b32 %s, %s, 15" % (sr(S_RING), sr(S_WAVE)))
    a("s_waitcnt lgkmcnt(0)")
    a("s_cmp_eq_u32 %s, 1" % sr(S_TYPE))
    a("s_cbranch_scc1 L_setupA")
    a("s_and_b32 s76, s45, 3")
    a("s_lshl_b32 s77, s3, 2")
    a("s_add_u32 s76, s76, s77")
    a("s_lshr_b32 s77, s45, 2")
    a("s_lshl_b32 s78, s77, 5")
    a("s_add_u32 s78, s78, s76")
    a("s_lshl_b32 s78, s78, 18")
    a("s_add_u32 %s, %s, s78" % (sr(S_K), sr(S_P + 12)))
    a("s_addc_u32 %s, %s, 0" % (sr(S_K + 1), sr(S_P + 13)))
    a("s_add_u32 %s, %s, s78" % (sr(S_V), sr(S_P + 14)))
    a("s_addc_u32 %s, %s, 0" % (sr(S_V + 1), sr(S_P + 15)))
    a("s_mov_b32 %s, %d" % (sr(S_K + 2), 4 * 32 * 262144 + 262144))
    a("s_mov_b32 %s, %s" % (sr(S_X), sr(S_P + 10)))
    a("s_mov_b32 %s, %s" % (sr(S_X + 1), sr(S_P + 11)))
    a("s_mov_b32 %s, %s" % (sr(S_W), sr(S_P + 16)))
    a("s_mov_b32 %s, %s" % (sr(S_W + 1), sr(S_P + 17)))
    a("s_lshl_b32 s79, s46, 2")
    a("s_add_u32 s79, s79, s77")
    a("s_lshl_b32 %s, s79, 16" % sr(S_XOFF))
    a("s_lshl_b32 %s, s76, 8" % sr(S_WOFF))
    a("s_lshl_b32 %s, s77, 19" % sr(S_OOFF0))
    a("s_lshl_b32 s79, s76, 8")
    a("s_add_u32 %s, %s, s79" % (sr(S_OOFF0), sr(S_OOFF0)))
    a("s_add_u32 %s, %s, %d" % (sr(S_OOFF0), sr(S_OOFF0), 4 << 20))
    a("s_add_u32 %s, %s, %d" % (sr(S_OOFF1), sr(S_OOFF0), 4 << 19))
    a("s_branch L_setup_done")
    a.label("L_setupA")
    a("s_sub_u32 s45, s45, 16")
    a("s_lshr_b32 s77, s45, 1")
    a("s_and_b32 s76, s45, 1")
    a("s_lshl_b32 s76, s76, 1")
    a("s_lshl_b32 s78, s3, 2")
    a("s_add_u32 s76, s76, s78")
    a("s_lshl_b32 s78, s77, 3")
    a("s_add_u32 s78, s78, s3")
    a("s_lshl_b32 s78, s78, 18")
    a("s_add_u32 %s, %s, s78" % (sr(S_K), sr(S_P + 2)))
    a("s_addc_u32 %s, %s, 0" % (sr(S_K + 1), sr(S_P + 3)))
    a("s_add_u32 %s, %s, s78" % (sr(S_V), sr(S_P + 4)))
    a("s_addc_u32 %s, %s, 0" % (sr(S_V + 1), sr(S_P + 5)))
    a("s_mov_b32 %s, 262144" % sr(S_K + 2))
    a("s_mov_b32 %s, %s" % (sr(S_X), sr(S_P + 0)))
    a("s_mov_b32 %s, %s" % (sr(S_X + 1), sr(S_P + 1)))
    a("s_mov_b32 %s, %s" % (sr(S_W), sr(S_P + 6)))
    a("s_mov_b32 %s, %s" % (sr(S_W + 1), sr(S_P + 7)))
    a("s_lshl_b32 %s, s77, 16" % sr(S_XOFF))
    a("s_add_u32 s79, s76, s46")
    a("s_lshl_b32 %s, s79, 8" % sr(S_WOFF))
    a("s_lshl_b32 %s, s77, 19" % sr(S_OOFF0))
    a("s_lshl_b32 s79, s76, 8")
    a("s_add_u32 %s, %s, s79" % (sr(S_OOFF0), sr(S_OOFF0)))
    a("s_add_u32 %s, %s, 256" % (sr(S_OOFF1), sr(S_OOFF0)))
    a.label("L_setup_done")
    a("s_lshl_b32 s79, s47, 7")
    a("s_add_u32 %s, %s, s79" % (sr(S_WOFF), sr(S_WOFF)))
    a("s_mov_b32 %s, %s" % (sr(S_V + 2), sr(S_K + 2)))
    a("s_mov_b32 %s, 0x00020000" % sr(S_K + 3))
    a("s_mov_b32 %s, 0x00020000" % sr(S_V + 3))
    a("s_mov_b32 %s, 524288" % sr(S_X + 2))
    a("s_mov_b32 %s, 0x00020000" % sr(S_X + 3))
    a("s_mov_b32 %s, 4194304" % sr(S_W + 2))
    a("s_mov_b32 %s, 0x00020000" % sr(S_W + 3))
    a("s_mov_b32 %s, %s" % (sr(S_O), sr(S_P + 18)))
    a("s_mov_b32 %s, %s" % (sr(S_O + 1), sr(S_P + 19)))
    a("s_mov_b32 %s, %d" % (sr(S_O + 2), 8 << 20))
    a("s_mov_b32 %s, 0x00020000" % sr(S_O + 3))
    a("s_lshl_b32 %s, %s, 13" % (sr(S_PF), sr(S_WAVE)))
    a("s_mov_b32 %s, %s" % (sr(S_M0K), sr(S_RING)))
    a("s_add_u32 %s, %s, 8192" % (sr(S_M0V), sr(S_RING)))

    stamp_srd(a, sr(S_P + 18), sr(S_P + 19))
    stamp(a, 0)
    L = V_LANE
    a("v_lshlrev_b32 %s, 4, %s" % (vr(V_L16), vr(L)))
    a("v_lshrrev_b32 v40, 4, %s" % vr(L))
    a("v_and_b32 v41, 15, %s" % vr(L))
    a("v_lshlrev_b32 v42, 2, v40")
    a("v_xor_b32 v42, v42, v41")
    a("v_lshlrev_b32 v42, 4, v42")
    a("v_lshl_add_u32 %s, v40, 8, v42" % vr(V_DMA))
    for n in range(1, 4):
        a("v_xor_b32 %s, %d, %s" % (vr(V_DMA + n), 16 * n, vr(V_DMA)))
    a("v_and_b32 v43, 3, v41")
    a("v_lshlrev_b32 v43, 2, v43")
    a("v_lshrrev_b32 v44, 2, v41")
    a("v_or_b32 v43, v43, v44")
    a("v_lshrrev_b32 v44, 5, %s" % vr(L))
    a("v_xor_b32 v45, v44, v43")
    a("v_lshlrev_b32 v45, 4, v45")
    a("v_and_b32 v46, 31, %s" % vr(L))
    a("v_lshl_add_u32 %s, v46, 8, v45" % vr(V_QA0))
    a("v_add_u32 %s, %s, %s" % (vr(V_KA), sr(S_RING), vr(V_QA0)))
    a("v_lshlrev_b32 %s, 13, v46" % vr(V_OVOFF))
    a("v_lshl_add_u32 %s, v44, 4, %s" % (vr(V_OVOFF), vr(V_OVOFF)))
    a("s_lshl_b32 %s, %s, 5" % (sr(S_TMP), sr(S_WAVE)))
    a("v_add_u32 %s, %s, %s" % (vr(V_OVOFF), sr(S_TMP), vr(V_OVOFF)))
    a("v_lshrrev_b32 v45, 2, v41")
    a("v_and_b32 v46, 1, v40")
    a("v_and_b32 v47, 1, v41")
    a("v_lshl_add_u32 v47, v46, 1, v47")
    a("v_xor_b32 v47, v47, v44")
    a("v_lshl_add_u32 v47, v45, 2, v47")
    a("v_lshlrev_b32 v47, 4, v47")
    a("v_bfe_u32 v46, v41, 1, 1")
    a("v_lshl_add_u32 v47, v46, 3, v47")
    a("v_lshl_add_u32 v45, v44, 2, v45")
    a("v_lshl_add_u32 v47, v45, 8, v47")
    a("v_add_u32 %s, %s, v47" % (vr(V_VA), sr(S_M0V)))

    VW, VX = 32, 28 + 4 + 8
    a("v_lshlrev_b32 v48, 3, v41")
    a("v_lshl_add_u32 v48, v40, 16, v48")
    for j in range(8):
        a("v_add_u32 %s, %d, v48" % (vr(VW + j), j * 8192))
    a("v_lshlrev_b32 v49, 1, v40")
    a("s_lshl_b32 %s, s47, 3" % sr(S_TMP))
    a("v_add_u32 v49, %s, v49" % sr(S_TMP))
    a("v_xor_b32 v49, v49, v43")
    a("v_lshlrev_b32 v49, 4, v49")
    a("v_lshl_add_u32 v49, v41, 8, v49")
    a("s_lshl_b32 %s, s46, 14" % sr(S_TMP))
    a("s_add_u32 %s, %s, %d" % (sr(S_TMP), sr(S_TMP), SCR))
    a("v_add_u32 v29, %s, v49" % sr(S_TMP))
    a("v_xor_b32 v30, 16, v29")
    a("v_lshlrev_b32 v49, 4, v40")
    a("v_lshl_add_u32 v49, v41, 10, v49")
    for qq in range(4):
        a("v_add_u32 %s, %d, v49" % (vr(VX + qq), qq * 16384))

    dmas = []
    for u in range(4):
        srd = S_K if u % 2 == 0 else S_V
        for g in range(2):
            for n in range(4):
                pre = []
                if n % 2 == 0:
                    pre.append("s_add_u32 m0, %s, %d" % (sr(S_RING), u * 8192 + g * 4096))
                    pre.append("s_add_u32 %s, %s, %d" % (sr(S_TMP), sr(S_PF), (u // 2) * 32768 + g * 4096))
                dmas.append((pre, "buffer_load_dwordx4 %s, %s, %s offen offset:%d%s lds" % (
                    vr(V_DMA + n), sr(srd, 4), sr(S_TMP), n * 1024, " nt" if OPT["nt"] else "")))

    def extra(ks):
        for pre, ld in dmas[2 * ks:2 * ks + 2]:
            for p in pre:
                a(p)
            a.vmem(ld)

    V_RAW, V_XF, V_AF, V_ACC = 64, 128, 48, 192
    gemm_direct(a, 4, 16, 4, VW, VX, V_RAW, V_XF, V_AF, V_ACC, S_X, S_W, S_XOFF, S_WOFF, 32 * 8192, extra)
    a("s_add_u32 %s, %s, 65536" % (sr(S_PF), sr(S_PF)))
    if OPT["stamp"]:
        a("v_mov_b32 v25, v30")
        stamp(a, 1)
        a("v_mov_b32 v30, v25")
    a("s_nop 7")
    for qq in range(4):
        for r in range(4):
            for ih in range(2):
                a("v_cvt_pk_bf16_f32 %s, %s, %s" % (vr(64 + qq * 8 + 2 * r + ih),
                                                   vr(V_ACC + ((2 * ih) * 4 + qq) * 4 + r), vr(V_ACC + ((2 * ih + 1) * 4 + qq) * 4 + r)))
        a("ds_write_b128 v29, %s offset:%d" % (vr(64 + qq * 8, 4), qq * 4096))
        a("ds_write_b128 v30, %s offset:%d" % (vr(64 + qq * 8 + 4, 4), qq * 4096))
    a("s_waitcnt lgkmcnt(0)")
    a("s_barrier")
    a("v_add_u32 v29, %d, %s" % (SCR, vr(V_QA0)))
    cnt = 0
    for s in range(8):
        if s:
            a("v_xor_b32 v30, %d, v29" % (32 * s))
        for qb in range(4):
            a("ds_read_b128 %s, %s offset:%d" % (vr(V_Q + (qb * 8 + s) * 4, 4), "v30" if s else "v29", qb * 8192))
        if s % 2 == 1:
            a("s_waitcnt lgkmcnt(4)")
    a("s_waitcnt lgkmcnt(0)")
    a("s_barrier")
    stamp(a, 2)
    a("s_cmp_eq_u32 %s, 1" % sr(S_TYPE))
    a("s_cbranch_scc1 L_typeA")

    init_pass(a, 2)
    tile_loop(a, 2, "b")
    a("s_nop 0")
    stamp(a, 3)
    combine(a, 0, S_OOFF0, oneshot=False)
    stamp(a, 4)
    for r in range(64):
        a("v_mov_b32 %s, %s" % (vr(V_Q + r), vr(V_Q + 64 + r)))
    init_pass(a, 2)
    tile_loop(a, 2, "c")
    stamp(a, 5)
    combine(a, 0, S_OOFF1, oneshot=True)
    stamp(a, 6)
    a("s_endpgm")
    slow_path(a, 0, 0, "b0")
    slow_path(a, 1, 64, "b1")
    slow_path(a, 0, 0, "c0")
    slow_path(a, 1, 64, "c1")

    a.label("L_typeA")
    init_pass(a, 4)
    tile_loop(a, 4, "a")
    stamp(a, 5)
    combine(a, 0, S_OOFF0, oneshot=True)
    combine(a, 2, S_OOFF1, oneshot=True)
    stamp(a, 6)
    a.label("L_end1")
    a("s_endpgm")
    for j in range(4):
        slow_path(a, j, 64 * j, "a%d" % j)


def kernel2(a):
    a.label("oproj_kernel")
    a("s_cmp_ge_u32 s2, 256")
    a("s_cbranch_scc1 L_end2")
    a("s_load_dwordx2 s[48:49], s[0:1], 32")
    a("s_load_dwordx2 s[50:51], s[0:1], 72")
    a("s_load_dwordx2 s[52:53], s[0:1], 80")
    a("s_load_dwordx2 s[54:55], s[0:1], 96")
    a("v_lshrrev_b32 v1, 6, v0")
    a("v_and_b32 v0, 63, v0")
    a("v_readfirstlane_b32 %s, v1" % sr(S_WAVE))
    a("s_and_b32 s3, s2, 7")
    a("s_lshr_b32 s45, s2, 3")
    a("s_lshr_b32 s46, s3, 2")
    a("s_and_b32 s47, s3, 1")
    a("s_lshl_b32 s47, s47, 2")
    a("s_and_b32 s56, s45, 3")
    a("s_add_u32 s47, s47, s56")
    a("s_bfe_u32 s56, s3, 0x10001")
    a("s_lshl_b32 s56, s56, 3")
    a("s_lshr_b32 s57, s45, 2")
    a("s_add_u32 s56, s56, s57")
    a("s_mov_b32 %s, 0x%08x" % (sr(S_SELLO), SEL_LO))
    a("s_mov_b32 %s, 0x%08x" % (sr(S_SELHI), SEL_HI))
    a("s_waitcnt lgkmcnt(0)")
    a("s_cmp_eq_u32 s46, 0")
    a("s_cselect_b32 %s, s48, s50" % sr(S_W))
    a("s_cselect_b32 %s, s49, s51" % sr(S_W + 1))
    a("s_mov_b32 %s, 4194304" % sr(S_W + 2))
    a("s_mov_b32 %s, 0x00020000" % sr(S_W + 3))
    a("s_mov_b32 %s, s54" % sr(S_X))
    a("s_mov_b32 %s, s55" % sr(S_X + 1))
    a("s_mov_b32 %s, %d" % (sr(S_X + 2), 8 << 20))
    a("s_mov_b32 %s, 0x00020000" % sr(S_X + 3))
    a("s_mov_b32 %s, s52" % sr(S_O))
    a("s_mov_b32 %s, s53" % sr(S_O + 1))
    a("s_mov_b32 %s, 1048576" % sr(S_O + 2))
    a("s_mov_b32 %s, 0x00020000" % sr(S_O + 3))
    stamp_srd(a, "s54", "s55")
    stamp(a, 0, base=65536)
    a("s_lshl_b32 %s, s46, 22" % sr(S_XOFF))
    a("s_lshl_b32 s57, s47, 19")
    a("s_add_u32 %s, %s, s57" % (sr(S_XOFF), sr(S_XOFF)))
    a("s_lshl_b32 s57, %s, 11" % sr(S_WAVE))
    a("s_add_u32 %s, %s, s57" % (sr(S_XOFF), sr(S_XOFF)))
    a("s_lshl_b32 %s, %s, 20" % (sr(S_WOFF), sr(S_WAVE)))
    a("s_lshl_b32 s57, s56, 6")
    a("s_add_u32 %s, %s, s57" % (sr(S_WOFF), sr(S_WOFF)))
    a("v_lshrrev_b32 v2, 4, v0")
    a("v_and_b32 v3, 15, v0")
    VW, VX = 8, 16
    a("v_lshlrev_b32 v4, 2, v3")
    a("v_lshl_add_u32 v4, v2, 13, v4")
    for j in range(8):
        a("v_add_u32 %s, %d, v4" % (vr(VW + j), j * 1024))
    a("v_lshlrev_b32 v4, 4, v2")
    a("v_lshl_add_u32 v4, v3, 13, v4")
    for qq in range(4):
        a("v_add_u32 %s, %d, v4" % (vr(VX + qq), qq * 131072))
    V_AF, V_ACC, V_RAW, V_XF = 24, 32, 64, 96
    gemm_direct(a, 2, 32, 4, VW, VX, V_RAW, V_XF, V_AF, V_ACC, S_X, S_W, S_XOFF, S_WOFF, 32 * 1024)
    a("s_nop 7")
    stamp(a, 1, base=65536)
    a("v_lshlrev_b32 v5, 4, v0")
    a("s_lshl_b32 s57, %s, 13" % sr(S_WAVE))
    a("v_add_u32 v6, s57, v5")
    for k in range(8):
        a("ds_write_b128 v6, %s offset:%d" % (vr(V_ACC + 4 * k, 4), k * 1024))
    a("s_waitcnt lgkmcnt(0)")
    a("s_barrier")
    a("s_lshl_b32 s57, %s, 10" % sr(S_WAVE))
    a("v_add_u32 v6, s57, v5")
    for w in range(4):
        for i in range(2):
            a("ds_read_b128 %s, v6 offset:%d" % (vr(64 + (w * 2 + i) * 4, 4), w * 8192 + i * 4096))
    a("s_waitcnt lgkmcnt(0)")
    for e in range(8):
        a("v_add_f32 %s, %s, %s" % (vr(64 + e), vr(64 + e), vr(72 + e)))
        a("v_add_f32 %s, %s, %s" % (vr(80 + e), vr(80 + e), vr(88 + e)))
    for e in range(8):
        a("v_add_f32 %s, %s, %s" % (vr(64 + e), vr(64 + e), vr(80 + e)))
    for r in range(4):
        a("v_cvt_pk_bf16_f32 %s, %s, %s" % (vr(96 + r), vr(64 + r), vr(68 + r)))
    a("v_lshlrev_b32 v4, 4, v2")
    a("v_lshl_add_u32 v4, v3, 11, v4")
    a("s_lshl_b32 s57, s47, 17")
    a("s_lshl_b32 s58, %s, 15" % sr(S_WAVE))
    a("s_add_u32 s57, s57, s58")
    a("s_lshl_b32 s58, s46, 10")
    a("s_add_u32 s57, s57, s58")
    a("s_lshl_b32 s58, s56, 6")
    a("s_add_u32 s57, s57, s58")
    a("buffer_store_dwordx4 v[96:99], v4, %s, s57 offen" % sr(S_O, 4))
    stamp(a, 2, base=65536)
    a.label("L_end2")
    a("s_endpgm")


def descriptor(name, vgpr, accum, sgpr=102):
    return """.amdhsa_kernel %s
  .amdhsa_next_free_vgpr %d
  .amdhsa_next_free_sgpr %d
  .amdhsa_accum_offset %d
  .amdhsa_group_segment_fixed_size 0
  .amdhsa_kernarg_size 104
  .amdhsa_user_sgpr_count 2
  .amdhsa_user_sgpr_kernarg_segment_ptr 1
  .amdhsa_system_sgpr_workgroup_id_x 1
.end_amdhsa_kernel
""" % (name, vgpr, sgpr, accum)


def main():
    out = HEADER
    out += "; @launch kernel=attn_kernel grid=(256,1,1) block=(256,1,1) lds=%d\n" % LDS1
    if OPT["k2"]:
        out += "; @launch kernel=oproj_kernel grid=(256,1,1) block=(256,1,1) lds=32768\n"
    out += '.amdgcn_target "amdgcn-amd-amdhsa--gfx950"\n.text\n'
    a = Asm()
    out += ".globl attn_kernel\n.p2align 8\n.type attn_kernel,@function\n"
    kernel1(a)
    out += a.text()
    a = Asm()
    out += ".globl oproj_kernel\n.p2align 8\n.type oproj_kernel,@function\n"
    kernel2(a)
    out += a.text()
    out += '.section .rodata,"a"\n.p2align 6\n'
    out += descriptor("attn_kernel", 512, 256)
    out += ".p2align 6\n"
    out += descriptor("oproj_kernel", 160, 160)
    open(sys.argv[1], "w").write(out)


main()
```

```python
import math, sys

NAME = "concat_heads__gqa_block_cached__mha_block_cached__near_ridge"

HEADER = """; Kernarg layout for this problem (104 bytes, ptrs only, base s[0:1]):
"""

OPT = dict(nt=0, nocompute=0, k2=1, stamp=0, qdma=1, rot=1, xort=2)
for arg in sys.argv[2:]:
    k, v = arg.split("=")
    OPT[k] = int(v)


def f32hex(x):
    import struct
    return "0x%08x" % struct.unpack("<I", struct.pack("<f", x))[0]


class Asm:
    def __init__(self):
        self.lines = []
        self.vm = 0
        self.uid = 0

    def __call__(self, s):
        self.lines.append("    " + s)

    def label(self, l):
        self.lines.append(l + ":")

    def c(self, s):
        self.lines.append("    ; " + s)

    def vmem(self, s):
        self(s)
        self.vm += 1
        return self.vm - 1

    def wait_vm(self, idx):
        n = self.vm - idx - 1
        assert 0 <= n
        n = min(n, 63)
        self("s_waitcnt vmcnt(%d)" % n)

    def text(self):
        return "\n".join(self.lines) + "\n"


def vr(b, n=1):
    return "v%d" % b if n == 1 else "v[%d:%d]" % (b, b + n - 1)


def ar(b, n=1):
    return "a%d" % b if n == 1 else "a[%d:%d]" % (b, b + n - 1)


def sr(b, n=1):
    return "s%d" % b if n == 1 else "s[%d:%d]" % (b, b + n - 1)


def interleave(a, mfmas, fillers, lead=0):
    n = len(mfmas)
    gaps = n - lead
    done = 0
    for i, m in enumerate(mfmas):
        a(m)
        if i >= lead and gaps > 0:
            want = (len(fillers) * (i - lead + 1) + gaps - 1) // gaps
            while done < want:
                emit(a, fillers[done])
                done += 1
    while done < len(fillers):
        emit(a, fillers[done])
        done += 1


def emit(a, f):
    if f.endswith(":"):
        a.label(f[:-1])
    else:
        a(f)


SCALE = 128 ** -0.5
CEXP = SCALE * math.log2(math.e)
TLAZY = 8.0
RING = 32768
SCR = 131072
STG = 65536
LDS1 = 163840
ITEM_JUMP = 4 * 32 * 262144 - 262144
SEL_LO = 0x05040100
SEL_HI = 0x07060302

S_K, S_V, S_X, S_W, S_O = 4, 8, 12, 16, 20
S_WAVE, S_TYPE, S_PF, S_T, S_RING = 24, 25, 26, 27, 28
S_XOFF, S_WOFF, S_C, S_SELLO, S_SELHI = 29, 30, 31, 32, 33
S_OOFF0, S_OOFF1, S_PASS, S_TMP, S_TMP2, S_M0K, S_M0V, S_FIRST = 34, 35, 36, 37, 38, 39, 40, 41
S_T8, S_JUMP, S_OOFF = 42, 43, 44
S_W2K, S_TMP3 = 80, 81
S_PFV, S_TK, S_TV, S_XORT = 85, 86, 87, 88
S_P = 48

V_LANE, V_KA, V_VA, V_TA, V_TB = 0, 1, 2, 3, 4
V_DMA = 5
V_MC = 9
V_L = 13
V_TMAX = 17
V_T0 = 18
V_OVOFF = 26
V_L16 = 27
V_QA0 = 28
V_VW = 31
V_VF = 32
V_KF = 64
V_S = 96
V_Q = 128


def gemm_direct(a, NC, KS, DEPTH, v_w, v_x, v_raw, v_xf, v_af, v_acc, srd_x, srd_w, s_xoff, s_woff,
                wstep, extra=None, ldflags=""):
    RW = NC // 2
    ldw = "buffer_load_dword" if RW == 1 else "buffer_load_dwordx2"
    last = {}

    def issue(ks):
        st = ks % DEPTH
        a("s_mul_i32 s81, s80, %d" % wstep)
        a("s_add_u32 s81, s81, %s" % sr(s_woff))
        a("s_lshl_b32 s82, s80, 6")
        a("s_add_u32 s82, s82, %s" % sr(s_xoff))
        a("s_add_u32 s80, s80, 1")
        a("s_and_b32 s80, s80, %d" % (KS - 1))
        for j in range(8):
            a.vmem("%s %s, %s, %s, s81 offen" % (ldw, vr(v_raw + (st * 8 + j) * RW, RW), vr(v_w + j), sr(srd_w, 4)))
        for qq in range(4):
            idx = a.vmem("buffer_load_dwordx4 %s, %s, %s, s82 offen%s" % (
                vr(v_xf + st * 16 + qq * 4, 4), vr(v_x + qq), sr(srd_x, 4), ldflags))
        last[ks] = idx
        if extra:
            extra(ks)

    for ks in range(min(DEPTH, KS)):
        issue(ks)
    for ks in range(KS):
        st = ks % DEPTH
        a.wait_vm(last[ks])
        for i in range(NC):
            w, e = i >> 1, i & 1
            for t in range(4):
                r0 = v_raw + (st * 8 + 2 * t) * RW + w
                r1 = v_raw + (st * 8 + 2 * t + 1) * RW + w
                a("v_perm_b32 %s, %s, %s, %s" % (vr(v_af + i * 4 + t), vr(r1), vr(r0), sr(S_SELHI if e else S_SELLO)))
        a("s_nop 1")
        for i in range(NC):
            for qq in range(4):
                acc = vr(v_acc + (i * 4 + qq) * 4, 4)
                a("v_mfma_f32_16x16x32_bf16 %s, %s, %s, %s" % (acc, vr(v_af + i * 4, 4), vr(v_xf + st * 16 + qq * 4, 4),
                                                              "0" if ks == 0 else acc))
        if ks + DEPTH < KS:
            issue(ks + DEPTH)


def gemm_lds_setup(a, L, XS, WS, s_dh, vb):
    vx0, vx1, vw0, vw1, px, pw, t0, t1 = vb, vb + 1, vb + 2, vb + 3, vb + 4, vb + 8, vb + 12, vb + 13
    a("v_lshrrev_b32 %s, 4, %s" % (vr(t0), vr(L)))
    a("v_and_b32 %s, 7, %s" % (vr(t1), vr(L)))
    a("v_xor_b32 %s, %s, %s" % (vr(t1), vr(t1), vr(t0)))
    a("v_lshlrev_b32 %s, 4, %s" % (vr(t1), vr(t1)))
    a("v_lshrrev_b32 %s, 3, %s" % (vr(t0), vr(L)))
    a("s_lshl_b32 %s, %s, 4" % (sr(S_TMP), sr(S_WAVE)))
    a("v_add_u32 %s, %s, %s" % (vr(t0), sr(S_TMP), vr(t0)))
    a("s_mov_b32 %s, %d" % (sr(S_TMP), XS))
    a("v_mul_lo_u32 %s, %s, %s" % (vr(t0), vr(t0), sr(S_TMP)))
    a("v_add_u32 %s, %s, %s" % (vr(vx0), vr(t0), vr(t1)))
    a("v_xor_b32 %s, 64, %s" % (vr(t1), vr(t1)))
    a("v_add_u32 %s, %s, %s" % (vr(vx1), vr(t0), vr(t1)))
    a("v_add_u32 %s, %d, %s" % (vr(vx1), 8 * XS - 1024, vr(vx1)))
    a("v_lshrrev_b32 %s, 4, %s" % (vr(t0), vr(L)))
    a("v_and_b32 %s, 15, %s" % (vr(t1), vr(L)))
    a("v_lshlrev_b32 %s, 2, %s" % (vr(vw0), vr(t0)))
    a("v_xor_b32 %s, %s, %s" % (vr(t1), vr(t1), vr(vw0)))
    a("s_lshl_b32 %s, %s, 1" % (sr(S_TMP), sr(S_WAVE)))
    a("s_and_b32 %s, %s, 3" % (sr(S_TMP), sr(S_TMP)))
    a("v_xor_b32 %s, %s, %s" % (vr(t1), sr(S_TMP), vr(t1)))
    a("v_lshlrev_b32 %s, 4, %s" % (vr(t1), vr(t1)))
    a("s_lshl_b32 %s, %s, 3" % (sr(S_TMP), sr(S_WAVE)))
    a("v_add_u32 %s, %s, %s" % (vr(t0), sr(S_TMP), vr(t0)))
    a("s_mov_b32 %s, %d" % (sr(S_TMP), WS))
    a("v_mul_lo_u32 %s, %s, %s" % (vr(t0), vr(t0), sr(S_TMP)))
    a("v_add_u32 %s, %s, %s" % (vr(vw0), vr(t0), vr(t1)))
    a("v_xor_b32 %s, 16, %s" % (vr(t1), vr(t1)))
    a("v_add_u32 %s, %s, %s" % (vr(vw1), vr(t0), vr(t1)))
    a("v_add_u32 %s, %d, %s" % (vr(vw1), 4 * WS - 1024, vr(vw1)))
    a("v_bfe_u32 %s, %s, 1, 3" % (vr(t0), vr(L)))
    a("v_lshrrev_b32 %s, 5, %s" % (vr(t1), vr(L)))
    a("v_xor_b32 %s, %s, %s" % (vr(t0), vr(t0), vr(t1)))
    a("v_lshlrev_b32 %s, 4, %s" % (vr(t0), vr(t0)))
    a("v_and_b32 %s, 31, %s" % (vr(t1), vr(L)))
    a("v_lshl_add_u32 %s, %s, 7, %s" % (vr(px), vr(t1), vr(t0)))
    for k in range(1, 4):
        a("v_xor_b32 %s, %d, %s" % (vr(px + k), 32 * k, vr(px)))
    a("v_bfe_u32 %s, %s, 4, 1" % (vr(t0), vr(L)))
    a("v_and_b32 %s, 1, %s" % (vr(t1), vr(L)))
    a("v_lshl_add_u32 %s, %s, 1, %s" % (vr(t0), vr(t0), vr(t1)))
    a("v_lshrrev_b32 %s, 5, %s" % (vr(t1), vr(L)))
    a("v_lshlrev_b32 %s, 1, %s" % (vr(pw + 1), vr(t1)))
    a("v_xor_b32 %s, %s, %s" % (vr(t0), vr(t0), vr(pw + 1)))
    a("v_bfe_u32 %s, %s, 2, 2" % (vr(pw + 1), vr(L)))
    a("v_lshl_add_u32 %s, %s, 2, %s" % (vr(t0), vr(pw + 1), vr(t0)))
    a("v_lshlrev_b32 %s, 4, %s" % (vr(t0), vr(t0)))
    a("v_lshl_add_u32 %s, %s, 3, %s" % (vr(t1), vr(t1), vr(pw + 1)))
    a("v_lshl_add_u32 %s, %s, 8, %s" % (vr(t0), vr(t1), vr(t0)))
    a("v_bfe_u32 %s, %s, 1, 1" % (vr(t1), vr(L)))
    a("v_lshl_add_u32 %s, %s, 3, %s" % (vr(t0), vr(t1), vr(t0)))
    a("s_lshl_b32 %s, %s, 7" % (sr(S_TMP), sr(s_dh)))
    a("v_xor_b32 %s, %s, %s" % (vr(pw), sr(S_TMP), vr(t0)))
    a("v_xor_b32 %s, 16, %s" % (vr(pw + 1), vr(pw)))
    a("v_xor_b32 %s, 64, %s" % (vr(pw + 2), vr(pw)))
    a("v_xor_b32 %s, 80, %s" % (vr(pw + 3), vr(pw)))


def gemm_lds(a, NX, NCG, XUS, WS, base, NSLOT, off, vb, v_fr, v_acc, srd_x, srd_w, s_xoff, s_woff, s_xsel, s_wsel,
             after_first=None, on_free=None, xflags=""):
    vx0, vx1, vw0, vw1, px, pw, t0, t1 = vb, vb + 1, vb + 2, vb + 3, vb + 4, vb + 8, vb + 12, vb + 13
    NU = NX + 2 * NCG
    NCH = 8
    total = NU * NCH
    slot_addr = lambda u: base + ((u + off) % NSLOT) * 8192
    lastop = {}

    def issue(u):
        c, k = divmod(u, NU)
        if k == 0:
            a("s_lshl_b32 s83, s82, 7")
            a("s_add_u32 s83, s83, %s" % sr(s_xoff))
            a("s_mul_i32 s84, s82, %d" % (64 * WS))
            a("s_add_u32 s84, s84, %s" % sr(s_woff))
            a("s_add_u32 s82, s82, 1")
            a("s_and_b32 s82, s82, 7")
        a("s_add_u32 m0, %s, %d" % (sr(S_W2K), slot_addr(u)))
        if k < NX:
            a("s_add_u32 %s, s83, %d" % (sr(S_TMP), k * XUS))
            a.vmem("buffer_load_dwordx4 %s, %s, %s offen%s lds" % (vr(vx0), sr(srd_x, 4), sr(S_TMP), xflags))
            i = a.vmem("buffer_load_dwordx4 %s, %s, %s offen offset:1024%s lds" % (vr(vx1), sr(srd_x, 4), sr(S_TMP), xflags))
        else:
            cg, half = divmod(k - NX, 2)
            a("s_add_u32 %s, s84, %d" % (sr(S_TMP), (half * 32) * WS + cg * 256))
            a.vmem("buffer_load_dwordx4 %s, %s, %s offen lds" % (vr(vw0), sr(srd_w, 4), sr(S_TMP)))
            i = a.vmem("buffer_load_dwordx4 %s, %s, %s offen offset:1024 lds" % (vr(vw1), sr(srd_w, 4), sr(S_TMP)))
        lastop[c] = i

    nxt = min(NSLOT, total)
    for u in range(nxt):
        issue(u)
    if after_first:
        after_first()
    XF, WF = v_fr, v_fr + 32
    for c in range(NCH):
        a.wait_vm(lastop[c])
        a("s_barrier")
        if c >= 1:
            for _ in range(NU):
                if nxt < total:
                    issue(nxt)
                    nxt += 1
            if on_free:
                on_free(c - 1, [((u + off) % NSLOT) for u in range(c * NU, total)])
        u0 = c * NU
        if NX == 2:
            a("s_mov_b32 %s, %d" % (sr(S_TMP2), slot_addr(u0)))
            a("s_cmp_eq_u32 %s, 0" % sr(s_xsel))
            a("s_cselect_b32 %s, %s, %d" % (sr(S_TMP2), sr(S_TMP2), slot_addr(u0 + 1)))
            xb = sr(S_TMP2)
        else:
            xb = "%d" % slot_addr(u0)
        for hf in range(2):
            if NCG == 2:
                a("s_mov_b32 %s, %d" % (sr(S_TMP3), slot_addr(u0 + NX + hf)))
                a("s_cmp_eq_u32 %s, 0" % sr(s_wsel))
                a("s_cselect_b32 %s, %s, %d" % (sr(S_TMP3), sr(S_TMP3), slot_addr(u0 + NX + 2 + hf)))
                wb = sr(S_TMP3)
            else:
                wb = "%d" % slot_addr(u0 + NX + hf)
            for k2 in range(2):
                s_ = hf * 2 + k2
                a("v_add_u32 %s, %s, %s" % (vr(t0), xb, vr(px + s_)))
                for qbl in range(2):
                    a("ds_read_b128 %s, %s offset:%d" % (vr(XF + (qbl * 4 + s_) * 4, 4), vr(t0), qbl * 4096))
            for dbl in range(2):
                for hr in range(2):
                    tt = t1 if hr else t0
                    a("v_add_u32 %s, %s, %s" % (vr(tt), wb, vr(pw + dbl * 2 + hr)))
                    for k2 in range(2):
                        s_ = hf * 2 + k2
                        a("ds_read_b64_tr_b16 %s, %s offset:%d" % (vr(WF + (dbl * 4 + s_) * 4 + 2 * hr, 2), vr(tt), k2 * 4096 + hr * 1024))
            if hf == 0:
                a("s_waitcnt lgkmcnt(2)")
            if hf == 1:
                a("s_waitcnt lgkmcnt(12)")
                mf(a, 0, c, XF, WF, v_acc)
        a("s_waitcnt lgkmcnt(0)")
        mf(a, 1, c, XF, WF, v_acc)


def mf(a, hf, c, XF, WF, v_acc):
    for k2 in range(2):
        s_ = hf * 2 + k2
        for dbl in range(2):
            for qbl in range(2):
                acc = vr(v_acc + (dbl * 2 + qbl) * 16, 16)
                a("v_mfma_f32_32x32x16_bf16 %s, %s, %s, %s" % (acc, vr(WF + (dbl * 4 + s_) * 4, 4), vr(XF + (qbl * 4 + s_) * 4, 4),
                                                              "0" if (c == 0 and s_ == 0) else acc))


def dma_unit(a, srd, s_m0_base, slot_imm, s_goff, lst=None):
    out = []
    nt = " nt" if (OPT["nt"] and slot_imm) else ""
    for g in range(2):
        if g == 0:
            out.append("s_mov_b32 m0, %s" % sr(s_m0_base))
            out.append("s_mov_b32 %s, %s" % (sr(S_TMP), sr(s_goff)))
        else:
            out.append("s_add_u32 m0, %s, 4096" % sr(s_m0_base))
            out.append("s_add_u32 %s, %s, 4096" % (sr(S_TMP), sr(s_goff)))
        for n in range(4):
            out.append("buffer_load_dwordx4 %s, %s, %s offen offset:%d%s lds" % (vr(V_DMA + n), sr(srd, 4), sr(S_TMP), n * 1024, nt))
    return out


def softmax_ops(j, sb, tag):
    f = []
    t0, t1, t2, t3, t4 = V_T0, V_T0 + 1, V_T0 + 2, V_T0 + 3, V_T0 + 4
    s = lambda i: vr(sb + i)
    f.append("v_max3_f32 %s, %s, %s, %s" % (vr(t0), s(0), s(1), s(2)))
    f.append("v_max3_f32 %s, %s, %s, %s" % (vr(t1), s(3), s(4), s(5)))
    f.append("v_max3_f32 %s, %s, %s, %s" % (vr(t2), s(6), s(7), s(8)))
    f.append("v_max3_f32 %s, %s, %s, %s" % (vr(t3), s(9), s(10), s(11)))
    f.append("v_max3_f32 %s, %s, %s, %s" % (vr(t4), s(12), s(13), s(14)))
    f.append("v_max3_f32 %s, %s, %s, %s" % (vr(t0), vr(t0), vr(t1), s(15)))
    f.append("v_max3_f32 %s, %s, %s, %s" % (vr(t2), vr(t2), vr(t3), vr(t4)))
    f.append("v_max_f32 %s, %s, %s" % (vr(V_TMAX), vr(t0), vr(t2)))
    f.append("v_fma_f32 %s, %s, %s, -%s" % (vr(t0), vr(V_TMAX), sr(S_C), vr(V_MC + j)))
    f.append("v_cmp_lt_f32 vcc, %s, %s" % (sr(S_T8), vr(t0)))
    f.append("s_cbranch_vccnz L_slow_%s" % tag)
    f.append("L_back_%s:" % tag)
    for i in range(16):
        f.append("v_fma_f32 %s, %s, %s, -%s" % (s(i), s(i), sr(S_C), vr(V_MC + j)))
        if i >= 1:
            f.append("v_exp_f32 %s, %s" % (s(i - 1), s(i - 1)))
        if i >= 3:
            f.append("v_add_f32 %s, %s, %s" % (vr(V_L + j), vr(V_L + j), s(i - 3)))
        if i >= 4 and i % 2 == 0:
            p = (i - 4) // 2
            f.append("v_cvt_pk_bf16_f32 %s, %s, %s" % (s(p), s(2 * p), s(2 * p + 1)))
    f.append("v_exp_f32 %s, %s" % (s(15), s(15)))
    f.append("v_add_f32 %s, %s, %s" % (vr(V_L + j), vr(V_L + j), s(13)))
    f.append("v_cvt_pk_bf16_f32 %s, %s, %s" % (s(6), s(12), s(13)))
    f.append("v_add_f32 %s, %s, %s" % (vr(V_L + j), vr(V_L + j), s(14)))
    f.append("v_add_f32 %s, %s, %s" % (vr(V_L + j), vr(V_L + j), s(15)))
    f.append("v_cvt_pk_bf16_f32 %s, %s, %s" % (s(7), s(14), s(15)))
    return f


def check_softmax_order():
    pass


def slow_path(a, j, obase, tag):
    if OPT["nocompute"]:
        return
    t0, t1, t2 = V_T0, V_T0 + 1, V_T0 + 2
    a.label("L_slow_%s" % tag)
    a("v_mov_b32 %s, %s" % (vr(t0), vr(V_TMAX)))
    a("v_mov_b32 %s, %s" % (vr(t1), vr(V_TMAX)))
    a("s_nop 1")
    a("v_permlane32_swap_b32 %s, %s" % (vr(t0), vr(t1)))
    a("s_nop 1")
    a("v_max_f32 %s, %s, %s" % (vr(t0), vr(t0), vr(t1)))
    a("v_mul_f32 %s, %s, %s" % (vr(t0), sr(S_C), vr(t0)))
    a("v_max_f32 %s, %s, %s" % (vr(t0), vr(t0), vr(V_MC + j)))
    a("v_sub_f32 %s, %s, %s" % (vr(t1), vr(V_MC + j), vr(t0)))
    a("v_exp_f32 %s, %s" % (vr(t1), vr(t1)))
    a("v_mov_b32 %s, %s" % (vr(V_MC + j), vr(t0)))
    a("v_mul_f32 %s, %s, %s" % (vr(V_L + j), vr(V_L + j), vr(t1)))
    a("s_cmp_eq_u32 %s, 0" % sr(S_T))
    a("s_cbranch_scc1 L_back_%s" % tag)
    a("s_nop 7")
    a("s_nop 7")
    for r in range(0, 64, 4):
        for q in range(4):
            a("v_accvgpr_read_b32 %s, %s" % (vr(t2 + q), ar(obase + r + q)))
        for q in range(4):
            a("v_mul_f32 %s, %s, %s" % (vr(t2 + q), vr(t2 + q), vr(t1)))
        for q in range(4):
            a("v_accvgpr_write_b32 %s, %s" % (ar(obase + r + q), vr(t2 + q)))
    a("s_nop 1")
    a("s_branch L_back_%s" % tag)


def qk_mfmas(j, sb):
    out = []
    for s in range(8):
        d = vr(sb, 16)
        out.append("v_mfma_f32_32x32x16_bf16 %s, %s, %s, %s" % (d, vr(V_KF + 4 * s, 4), vr(V_Q + (j * 8 + s) * 4, 4), "0" if s == 0 else d))
    return out


def pv_mfmas(j, sb):
    out = []
    for ks in range(2):
        for db in range(4):
            o = ar(j * 64 + db * 16, 16)
            out.append("v_mfma_f32_32x32x16_bf16 %s, %s, %s, %s" % (o, vr(V_VF + (db * 2 + ks) * 4, 4), vr(sb + 4 * ks, 4), o))
    return out


def tile_loop(a, NQB, tag):
    a("s_mov_b32 %s, 0" % sr(S_T))
    a.label("L_tile_%s" % tag)
    a("s_waitcnt vmcnt(24)")
    for s in range(8):
        ta = V_TA if s % 2 == 0 else V_TB
        if s == 0:
            a("ds_read_b128 %s, %s" % (vr(V_KF, 4), vr(V_KA)))
        else:
            a("v_xor_b32 %s, %d, %s" % (vr(ta), 32 * s, vr(V_KA)))
            a("ds_read_b128 %s, %s" % (vr(V_KF + 4 * s, 4), vr(ta)))
    nocomp = OPT["nocompute"]
    m = qk_mfmas(0, V_S)
    for s in range(8):
        a("s_waitcnt lgkmcnt(%d)" % (7 - s))
        if not nocomp:
            a(m[s])
    for x in dma_unit(a, S_K, S_M0K, 0, S_PF):
        a(x)
    a("s_waitcnt vmcnt(24)")
    vreads = []
    k = 0
    for db in range(4):
        for hr in range(2):
            ta = V_TA if k % 2 == 0 else V_TB
            k += 1
            x = db * 64 + hr * 32
            if x:
                vreads.append("v_xor_b32 %s, %d, %s" % (vr(ta), x, vr(V_VA)))
                ad = ta
            else:
                ad = V_VA
            for ks in range(2):
                vreads.append("ds_read_b64_tr_b16 %s, %s offset:%d" % (vr(V_VF + (db * 2 + ks) * 4 + 2 * hr, 2), vr(ad), ks * 4096 + hr * 2048))
    half = len(vreads) // 2
    for x in vreads[:half + 1]:
        a(x)
    vreads = vreads[:half + 1] + vreads[half + 1:half + 4] + ["s_waitcnt lgkmcnt(6)"] + vreads[half + 4:]
    post_v = ["s_waitcnt lgkmcnt(0)"] + dma_unit(a, S_V, S_M0V, 0, S_PF) + [
        "s_add_u32 %s, %s, 1" % (sr(S_T), sr(S_T)),
        "s_add_u32 %s, %s, 2" % (sr(S_PF), sr(S_T)),
        "s_xor_b32 %s, %s, %s" % (sr(S_PF), sr(S_PF), sr(S_XORT)),
        "s_lshl_b32 %s, %s, 15" % (sr(S_PF), sr(S_PF)),
        "s_add_u32 %s, %s, %s" % (sr(S_PF), sr(S_PF), sr(S_RING)),
        "s_xor_b32 %s, %s, 65536" % (sr(S_M0K), sr(S_M0K)),
        "s_xor_b32 %s, %s, 65536" % (sr(S_M0V), sr(S_M0V)),
        "v_xor_b32 %s, 65536, %s" % (vr(V_KA), vr(V_KA)),
        "v_xor_b32 %s, 65536, %s" % (vr(V_VA), vr(V_VA)),
    ]
    if nocomp:
        for x in vreads[half + 1:] + post_v:
            a(x)
    else:
        SB = lambda j: V_S + 16 * (j & 1)
        dma_part = post_v[:-9]
        tail_part = post_v[-9:]
        interleave(a, qk_mfmas(1, SB(1)), vreads[half + 1:] + softmax_ops(0, SB(0), tag + "0"))
        if NQB == 2:
            for x in dma_part[:1]:
                a(x)
            a("s_nop 1")
            interleave(a, pv_mfmas(0, SB(0)), ["s_nop 3"] + dma_part[1:] + softmax_ops(1, SB(1), tag + "1"))
            a("s_nop 1")
            interleave(a, pv_mfmas(1, SB(1)), tail_part)
        else:
            for x in dma_part[:1]:
                a(x)
            a("s_nop 1")
            interleave(a, pv_mfmas(0, SB(0)) + qk_mfmas(2, SB(2)), ["s_nop 3"] + dma_part[1:] + softmax_ops(1, SB(1), tag + "1"))
            a("s_nop 1")
            interleave(a, pv_mfmas(1, SB(1)) + qk_mfmas(3, SB(3)), ["s_nop 7", "s_nop 3"] + softmax_ops(2, SB(2), tag + "2"))
            a("s_nop 1")
            interleave(a, pv_mfmas(2, SB(2)), ["s_nop 7", "s_nop 3"] + softmax_ops(3, SB(3), tag + "3"))
            a("s_nop 1")
            interleave(a, pv_mfmas(3, SB(3)), tail_part)
    a("s_cmp_lt_u32 %s, 8" % sr(S_T))
    a("s_cbranch_scc1 L_tile_%s" % tag)


def tile_off(dst, s_cnt):
    return ["s_and_b32 %s, %s, 7" % (sr(dst), sr(s_cnt)),
            "s_lshl_b32 %s, %s, 15" % (sr(dst), sr(dst)),
            "s_lshr_b32 %s, %s, 3" % (sr(S_TMP2), sr(s_cnt)),
            "s_lshl_b32 %s, %s, 25" % (sr(S_TMP2), sr(S_TMP2)),
            "s_add_u32 %s, %s, %s" % (sr(dst), sr(dst), sr(S_TMP2)),
            "s_add_u32 %s, %s, %s" % (sr(dst), sr(dst), sr(S_RING)),
            "s_add_u32 %s, %s, 1" % (sr(s_cnt), sr(s_cnt))]


def v_unit_regs(stage):
    nt = " nt" if OPT["nt"] else ""
    out = []
    for g in range(2):
        if g:
            out.append("s_add_u32 %s, %s, 4096" % (sr(S_PFV), sr(S_PFV)))
        for n in range(4):
            out.append("buffer_load_dwordx4 %s, %s, %s, %s offen offset:%d%s" % (
                ar(128 + stage * 32 + (g * 4 + n) * 4, 4), vr(V_DMA + n), sr(S_V, 4), sr(S_PFV), n * 1024, nt))
    return out


def tile_loop_b(a, tag):
    a("s_mov_b32 %s, 0" % sr(S_T))
    a.label("L_tile_%s" % tag)
    for u in range(4):
        tg = "%s%d" % (tag, u)
        a("s_waitcnt vmcnt(40)")
        a("v_add_u32 %s, %s, %s" % (vr(V_KA), sr(S_M0K), vr(V_QA0)))
        for s_ in range(8):
            ta = V_TA if s_ % 2 == 0 else V_TB
            if s_ == 0:
                a("ds_read_b128 %s, %s" % (vr(V_KF, 4), vr(V_KA)))
            else:
                a("v_xor_b32 %s, %d, %s" % (vr(ta), 32 * s_, vr(V_KA)))
                a("ds_read_b128 %s, %s" % (vr(V_KF + 4 * s_, 4), vr(ta)))
        vw = ["ds_write_b128 %s, %s offset:%d" % (vr(V_VW), ar(128 + u * 32 + 4 * n, 4), n * 1024) for n in range(8)]
        for x in vw[:4]:
            a(x)
        m = qk_mfmas(0, V_S)
        for s_ in range(8):
            nw = 4 + max(0, s_ - 3)
            a("s_waitcnt lgkmcnt(%d)" % (7 - s_ + nw))
            a(m[s_])
            if 3 <= s_ < 7:
                a(vw[s_ + 1])
        for x in tile_off(S_PF, S_TK) + dma_unit(a, S_K, S_M0K, 1, S_PF):
            a(x)
        for x in tile_off(S_PFV, S_TV):
            a(x)
        a("s_waitcnt lgkmcnt(0)")
        for x in v_unit_regs(u):
            a(x)
        vreads = []
        k = 0
        for db in range(4):
            for hr in range(2):
                ta = V_TA if k % 2 == 0 else V_TB
                k += 1
                x = db * 64 + hr * 32
                if x:
                    vreads.append("v_xor_b32 %s, %d, %s" % (vr(ta), x, vr(V_VA)))
                    ad = ta
                else:
                    ad = V_VA
                for ks in range(2):
                    vreads.append("ds_read_b64_tr_b16 %s, %s offset:%d" % (vr(V_VF + (db * 2 + ks) * 4 + 2 * hr, 2), vr(ad), ks * 4096 + hr * 2048))
        half = len(vreads) // 2
        for x in vreads[:half + 1]:
            a(x)
        rest = vreads[half + 1:half + 4] + ["s_waitcnt lgkmcnt(6)"] + vreads[half + 4:]
        tail = ["s_add_u32 %s, %s, 1" % (sr(S_T), sr(S_T)),
                "s_add_u32 %s, %s, 32768" % (sr(S_M0K), sr(S_M0K)),
                "s_cmp_ge_u32 %s, 98304" % sr(S_M0K),
                "s_cselect_b32 %s, %s, %s" % (sr(S_M0K), sr(S_RING), sr(S_M0K))]
        SB = lambda j: V_S + 16 * (j & 1)
        interleave(a, qk_mfmas(1, SB(1)), rest + softmax_ops(0, SB(0), tg + "0"))
        a("s_waitcnt lgkmcnt(0)")
        a("s_nop 1")
        interleave(a, pv_mfmas(0, SB(0)), ["s_nop 7", "s_nop 1"] + softmax_ops(1, SB(1), tg + "1"))
        a("s_nop 1")
        interleave(a, pv_mfmas(1, SB(1)), tail)
    a("s_cmp_lt_u32 %s, 8" % sr(S_T))
    a("s_cbranch_scc1 L_tile_%s" % tag)


def stamp(a, idx, srd=None, base=0):
    if not OPT["stamp"]:
        return
    a("s_memrealtime s[90:91]")
    a("s_memtime s[94:95]")
    a("s_waitcnt lgkmcnt(0)")
    a("s_lshl_b32 s92, s2, 2")
    a("s_add_u32 s92, s92, %s" % sr(S_WAVE))
    a("s_lshl_b32 s92, s92, 6")
    a("s_add_u32 s92, s92, %d" % ((16 << 20) + base + idx * 4))
    a("v_mov_b32 v25, s90")
    a("v_mov_b32 v24, 0")
    a("buffer_store_dword v25, v24, s[96:99], s92 offen")
    a("v_mov_b32 v23, s94")
    a("buffer_store_dword v23, v24, s[96:99], s92 offen offset:32")
    a.vm += 2


def stamp_srd(a, lo, hi):
    if not OPT["stamp"]:
        return
    a("s_mov_b32 s96, %s" % lo)
    a("s_mov_b32 s97, %s" % hi)
    a("s_mov_b32 s98, %d" % (32 << 20))
    a("s_mov_b32 s99, 0x00020000")


def init_pass(a, NQB):
    for j in range(NQB):
        a("v_mov_b32 %s, %s" % (vr(V_MC + j), f32hex(-1e30)))
        a("v_mov_b32 %s, 0" % vr(V_L + j))
    for r in range(NQB * 64):
        a("v_accvgpr_write_b32 %s, 0" % ar(r))


def combine(a, j0, s_ooff, oneshot):
    t = V_T0
    F = 32
    RB = 64
    OUT = 96
    AD = 40
    a.c("combine: stats")
    a("s_nop 7")
    a("s_nop 7")
    for jj in range(2):
        j = j0 + jj
        a("v_mov_b32 %s, %s" % (vr(t), vr(V_L + j)))
        a("v_mov_b32 %s, %s" % (vr(t + 1), vr(V_L + j)))
        a("s_nop 1")
        a("v_permlane32_swap_b32 %s, %s" % (vr(t), vr(t + 1)))
        a("s_nop 1")
        a("v_add_f32 %s, %s, %s" % (vr(t + 3 + 2 * jj), vr(t), vr(t + 1)))
        a("v_mov_b32 %s, %s" % (vr(t + 2 + 2 * jj), vr(V_MC + j)))
    a("s_lshl_b32 %s, %s, 10" % (sr(S_TMP), sr(S_WAVE)))
    a("s_add_u32 %s, %s, %d" % (sr(S_TMP), sr(S_TMP), SCR))
    a("v_lshlrev_b32 %s, 3, %s" % (vr(AD), vr(V_LANE)))
    a("v_add_u32 %s, %s, %s" % (vr(AD + 1), sr(S_TMP), vr(AD)))
    a("ds_write_b64 %s, %s" % (vr(AD + 1), vr(t + 2, 2)))
    a("ds_write_b64 %s, %s offset:512" % (vr(AD + 1), vr(t + 4, 2)))

    def write_round(rho, vaddr, imm):
        jj, dp = rho >> 1, rho & 1
        for blk in range(2):
            for q in range(4):
                a("ds_write_b128 %s, %s offset:%d" % (vr(vaddr), ar((j0 + jj) * 64 + (2 * dp + blk) * 16 + 4 * q, 4), imm + (blk * 4 + q) * 1024))

    def read_stats():
        a("v_add_u32 %s, %d, %s" % (vr(AD + 1), SCR, vr(AD)))
        for jj in range(2):
            for w in range(4):
                a("ds_read_b64 %s, %s offset:%d" % (vr(RB + (jj * 4 + w) * 2, 2), vr(AD + 1), (w * 2 + jj) * 512))
        a("s_waitcnt lgkmcnt(0)")
        for jj in range(2):
            m = lambda w: vr(RB + (jj * 4 + w) * 2)
            l = lambda w: vr(RB + (jj * 4 + w) * 2 + 1)
            a("v_max3_f32 %s, %s, %s, %s" % (vr(t), m(0), m(1), m(2)))
            a("v_max_f32 %s, %s, %s" % (vr(t), vr(t), m(3)))
            for w in range(4):
                a("v_sub_f32 %s, %s, %s" % (vr(F + jj * 4 + w), m(w), vr(t)))
            for w in range(4):
                a("v_exp_f32 %s, %s" % (vr(F + jj * 4 + w), vr(F + jj * 4 + w)))
            a("s_nop 0")
            a("v_mul_f32 %s, %s, %s" % (vr(t + 1), vr(F + jj * 4), l(0)))
            for w in range(1, 4):
                a("v_fmac_f32 %s, %s, %s" % (vr(t + 1), vr(F + jj * 4 + w), l(w)))
            a("v_rcp_f32 %s, %s" % (vr(t + 1), vr(t + 1)))
            a("s_nop 0")
            for w in range(4):
                a("v_mul_f32 %s, %s, %s" % (vr(F + jj * 4 + w), vr(F + jj * 4 + w), vr(t + 1)))

    def reduce_round(rho, vaddr, wstride, imm):
        jj, dp = rho >> 1, rho & 1
        for w in range(4):
            for q in range(2):
                off = imm + w * wstride + q * 1024
                if off < 65536:
                    a("ds_read_b128 %s, %s offset:%d" % (vr(RB + (w * 2 + q) * 4, 4), vr(vaddr), off))
                else:
                    a("ds_read_b128 %s, %s offset:%d" % (vr(RB + (w * 2 + q) * 4, 4), vr(vaddr + 1), off - 65536))
        for w in range(4):
            a("s_waitcnt lgkmcnt(%d)" % (6 - 2 * w))
            for e in range(8):
                if w == 0:
                    a("v_mul_f32 %s, %s, %s" % (vr(OUT + e), vr(F + jj * 4), vr(RB + e)))
                else:
                    a("v_fmac_f32 %s, %s, %s" % (vr(OUT + e), vr(F + jj * 4 + w), vr(RB + w * 8 + e)))
        o4 = OUT + 8 + 4 * (rho & 1)
        for e in range(4):
            a("v_cvt_pk_bf16_f32 %s, %s, %s" % (vr(o4 + e), vr(OUT + 2 * e), vr(OUT + 2 * e + 1)))
        if jj == 1:
            a("s_add_u32 %s, %s, 262144" % (sr(S_TMP), sr(s_ooff)))
            so = S_TMP
        else:
            so = s_ooff
        a("buffer_store_dwordx4 %s, %s, %s, %s offen offset:%d" % (vr(o4, 4), vr(V_OVOFF), sr(S_O, 4), sr(so), dp * 128))

    a("s_lshl_b32 %s, %s, 11" % (sr(S_TMP2), sr(S_WAVE)))
    if oneshot:
        a("s_waitcnt vmcnt(0)")
        a("v_add_u32 %s, %s, %s" % (vr(AD + 2), sr(S_RING), vr(V_L16)))
        a("v_add_u32 %s, 65536, %s" % (vr(AD + 3), vr(AD + 2)))
        for rho in range(4):
            write_round(rho, AD + 2 + (rho >> 1), (rho & 1) * 32768)
        a("s_waitcnt lgkmcnt(0)")
        a("s_barrier")
        read_stats()
        a("v_add_u32 %s, %s, %s" % (vr(AD + 4), sr(S_TMP2), vr(V_L16)))
        a("v_add_u32 %s, 65536, %s" % (vr(AD + 5), vr(AD + 4)))
        for rho in range(4):
            reduce_round(rho, AD + 4, 8192, rho * 32768)
        a("s_barrier")
    else:
        a("s_waitcnt lgkmcnt(0)")
        a("s_barrier")
        read_stats()
        a("s_barrier")
        a("s_lshl_b32 %s, %s, 13" % (sr(S_TMP), sr(S_WAVE)))
        a("s_add_u32 %s, %s, %d" % (sr(S_TMP), sr(S_TMP), SCR))
        a("v_add_u32 %s, %s, %s" % (vr(AD + 2), sr(S_TMP), vr(V_L16)))
        a("s_add_u32 %s, %s, %d" % (sr(S_TMP2), sr(S_TMP2), SCR))
        a("v_add_u32 %s, %s, %s" % (vr(AD + 4), sr(S_TMP2), vr(V_L16)))
        for rho in range(4):
            write_round(rho, AD + 2, 0)
            a("s_waitcnt lgkmcnt(0)")
            a("s_barrier")
            reduce_round(rho, AD + 4, 8192, 0)
            a("s_barrier")


def kernel1(a):
    a.label("attn_kernel")
    a("s_cmp_ge_u32 s2, 256")
    a("s_cbranch_scc1 L_end1")
    a("s_load_dwordx16 %s, s[0:1], 0" % sr(S_P, 16))
    a("s_load_dwordx2 %s, s[0:1], 64" % sr(S_P + 16, 2))
    a("s_load_dwordx2 %s, s[0:1], 96" % sr(S_P + 18, 2))
    a("v_lshrrev_b32 v1, 6, v0")
    a("v_and_b32 %s, 63, v0" % vr(V_LANE))
    a("v_readfirstlane_b32 %s, v1" % sr(S_WAVE))
    a("s_and_b32 s3, s2, 7")
    a("s_lshr_b32 s45, s2, 3")
    a("s_cmp_ge_u32 s45, 16")
    a("s_cselect_b32 %s, 1, 0" % sr(S_TYPE))
    a("s_mov_b32 %s, %s" % (sr(S_C), f32hex(CEXP)))
    a("s_mov_b32 %s, 0x%08x" % (sr(S_SELLO), SEL_LO))
    a("s_mov_b32 %s, 0x%08x" % (sr(S_SELHI), SEL_HI))
    a("s_mov_b32 %s, %s" % (sr(S_T8), f32hex(TLAZY)))
    a("s_mov_b32 %s, %d" % (sr(S_JUMP), ITEM_JUMP))
    a("s_lshr_b32 s46, %s, 1" % sr(S_WAVE))
    a("s_and_b32 s47, %s, 1" % sr(S_WAVE))
    a("s_lshl_b32 %s, %s, 13" % (sr(S_RING), sr(S_WAVE)))
    a("s_lshl_b32 %s, %s, 11" % (sr(S_W2K), sr(S_WAVE)))
    a("s_waitcnt lgkmcnt(0)")
    a("s_cmp_eq_u32 %s, 1" % sr(S_TYPE))
    a("s_cbranch_scc1 L_setupA")
    a("s_and_b32 s76, s45, 3")
    a("s_lshl_b32 s77, s3, 2")
    a("s_add_u32 s76, s76, s77")
    a("s_lshr_b32 s77, s45, 2")
    a("s_lshl_b32 s78, s77, 5")
    a("s_add_u32 s78, s78, s76")
    a("s_lshl_b32 s78, s78, 18")
    a("s_add_u32 %s, %s, s78" % (sr(S_K), sr(S_P + 12)))
    a("s_addc_u32 %s, %s, 0" % (sr(S_K + 1), sr(S_P + 13)))
    a("s_add_u32 %s, %s, s78" % (sr(S_V), sr(S_P + 14)))
    a("s_addc_u32 %s, %s, 0" % (sr(S_V + 1), sr(S_P + 15)))
    a("s_mov_b32 %s, %d" % (sr(S_K + 2), 4 * 32 * 262144 + 262144))
    a("s_mov_b32 %s, %s" % (sr(S_X), sr(S_P + 10)))
    a("s_mov_b32 %s, %s" % (sr(S_X + 1), sr(S_P + 11)))
    a("s_mov_b32 %s, %s" % (sr(S_W), sr(S_P + 16)))
    a("s_mov_b32 %s, %s" % (sr(S_W + 1), sr(S_P + 17)))
    a("s_lshl_b32 %s, s77, 16" % sr(S_XOFF))
    a("s_lshl_b32 s82, s77, 1")
    a("s_and_b32 s83, s45, 3")
    a("s_add_u32 s82, s82, s83")
    a("s_and_b32 s82, s82, %d" % (7 if OPT["rot"] else 0))
    a("s_lshl_b32 %s, s76, 8" % sr(S_WOFF))
    a("s_lshl_b32 %s, s77, 19" % sr(S_OOFF0))
    a("s_lshl_b32 s79, s76, 8")
    a("s_add_u32 %s, %s, s79" % (sr(S_OOFF0), sr(S_OOFF0)))
    a("s_add_u32 %s, %s, %d" % (sr(S_OOFF0), sr(S_OOFF0), 4 << 20))
    a("s_add_u32 %s, %s, %d" % (sr(S_OOFF1), sr(S_OOFF0), 4 << 19))
    a("s_branch L_setup_done")
    a.label("L_setupA")
    a("s_sub_u32 s45, s45, 16")
    a("s_lshr_b32 s77, s45, 1")
    a("s_and_b32 s76, s45, 1")
    a("s_lshl_b32 s76, s76, 1")
    a("s_lshl_b32 s78, s3, 2")
    a("s_add_u32 s76, s76, s78")
    a("s_lshl_b32 s78, s77, 3")
    a("s_add_u32 s78, s78, s3")
    a("s_lshl_b32 s78, s78, 18")
    a("s_add_u32 %s, %s, s78" % (sr(S_K), sr(S_P + 2)))
    a("s_addc_u32 %s, %s, 0" % (sr(S_K + 1), sr(S_P + 3)))
    a("s_add_u32 %s, %s, s78" % (sr(S_V), sr(S_P + 4)))
    a("s_addc_u32 %s, %s, 0" % (sr(S_V + 1), sr(S_P + 5)))
    a("s_mov_b32 %s, 262144" % sr(S_K + 2))
    a("s_mov_b32 %s, %s" % (sr(S_X), sr(S_P + 0)))
    a("s_mov_b32 %s, %s" % (sr(S_X + 1), sr(S_P + 1)))
    a("s_mov_b32 %s, %s" % (sr(S_W), sr(S_P + 6)))
    a("s_mov_b32 %s, %s" % (sr(S_W + 1), sr(S_P + 7)))
    a("s_lshl_b32 %s, s77, 16" % sr(S_XOFF))
    a("s_lshl_b32 %s, s76, 8" % sr(S_WOFF))
    a("s_and_b32 %s, s45, 1" % sr(S_XORT))
    a("s_mul_i32 %s, %s, %d" % (sr(S_XORT), sr(S_XORT), OPT["xort"]))
    a("s_and_b32 s82, s45, 1")
    a("s_lshl_b32 s82, s82, 2")
    a("s_add_u32 s82, s82, s77")
    a("s_and_b32 s82, s82, %d" % (7 if OPT["rot"] else 0))
    a("s_lshl_b32 %s, s77, 19" % sr(S_OOFF0))
    a("s_lshl_b32 s79, s76, 8")
    a("s_add_u32 %s, %s, s79" % (sr(S_OOFF0), sr(S_OOFF0)))
    a("s_add_u32 %s, %s, 256" % (sr(S_OOFF1), sr(S_OOFF0)))
    a.label("L_setup_done")
    a("s_mov_b32 %s, %s" % (sr(S_V + 2), sr(S_K + 2)))
    a("s_mov_b32 %s, 0x00020000" % sr(S_K + 3))
    a("s_mov_b32 %s, 0x00020000" % sr(S_V + 3))
    a("s_mov_b32 %s, 524288" % sr(S_X + 2))
    a("s_mov_b32 %s, 0x00020000" % sr(S_X + 3))
    a("s_mov_b32 %s, 4194304" % sr(S_W + 2))
    a("s_mov_b32 %s, 0x00020000" % sr(S_W + 3))
    a("s_mov_b32 %s, %s" % (sr(S_O), sr(S_P + 18)))
    a("s_mov_b32 %s, %s" % (sr(S_O + 1), sr(S_P + 19)))
    a("s_mov_b32 %s, %d" % (sr(S_O + 2), 8 << 20))
    a("s_mov_b32 %s, 0x00020000" % sr(S_O + 3))
    a("s_lshl_b32 %s, %s, 13" % (sr(S_PF), sr(S_WAVE)))
    a("s_mov_b32 %s, %s" % (sr(S_M0K), sr(S_RING)))
    a("s_add_u32 %s, %s, 32768" % (sr(S_M0V), sr(S_RING)))

    stamp_srd(a, sr(S_P + 18), sr(S_P + 19))
    stamp(a, 0)
    L = V_LANE
    a("v_lshlrev_b32 %s, 4, %s" % (vr(V_L16), vr(L)))
    a("v_lshrrev_b32 v40, 4, %s" % vr(L))
    a("v_and_b32 v41, 15, %s" % vr(L))
    a("v_lshlrev_b32 v42, 2, v40")
    a("v_xor_b32 v42, v42, v41")
    a("v_lshlrev_b32 v42, 4, v42")
    a("v_lshl_add_u32 %s, v40, 8, v42" % vr(V_DMA))
    for n in range(1, 4):
        a("v_xor_b32 %s, %d, %s" % (vr(V_DMA + n), 16 * n, vr(V_DMA)))
    a("v_and_b32 v43, 3, v41")
    a("v_lshlrev_b32 v43, 2, v43")
    a("v_lshrrev_b32 v44, 2, v41")
    a("v_or_b32 v43, v43, v44")
    a("v_lshrrev_b32 v44, 5, %s" % vr(L))
    a("v_xor_b32 v45, v44, v43")
    a("v_lshlrev_b32 v45, 4, v45")
    a("v_and_b32 v46, 31, %s" % vr(L))
    a("v_lshl_add_u32 %s, v46, 8, v45" % vr(V_QA0))
    a("v_add_u32 %s, %s, %s" % (vr(V_KA), sr(S_RING), vr(V_QA0)))
    a("v_lshlrev_b32 %s, 13, v46" % vr(V_OVOFF))
    a("v_lshl_add_u32 %s, v44, 4, %s" % (vr(V_OVOFF), vr(V_OVOFF)))
    a("s_lshl_b32 %s, %s, 5" % (sr(S_TMP), sr(S_WAVE)))
    a("v_add_u32 %s, %s, %s" % (vr(V_OVOFF), sr(S_TMP), vr(V_OVOFF)))
    a("v_lshrrev_b32 v45, 2, v41")
    a("v_and_b32 v46, 1, v40")
    a("v_and_b32 v47, 1, v41")
    a("v_lshl_add_u32 v47, v46, 1, v47")
    a("v_xor_b32 v47, v47, v44")
    a("v_lshl_add_u32 v47, v45, 2, v47")
    a("v_lshlrev_b32 v47, 4, v47")
    a("v_bfe_u32 v46, v41, 1, 1")
    a("v_lshl_add_u32 v47, v46, 3, v47")
    a("v_lshl_add_u32 v45, v44, 2, v45")
    a("v_lshl_add_u32 v47, v45, 8, v47")
    a("v_add_u32 %s, %s, v47" % (vr(V_VA), sr(S_M0V)))

    VB = 32
    gemm_lds_setup(a, L, 1024, 8192, 47, VB)
    a("s_cmp_eq_u32 %s, 1" % sr(S_TYPE))
    a("s_cbranch_scc1 L_typeA")

    def kv_unit(u):
        srd = S_K if u % 2 == 0 else S_V
        a("s_xor_b32 %s, %s, %d" % (sr(S_TMP2), sr(S_XORT), u // 2))
        a("s_lshl_b32 %s, %s, 15" % (sr(S_TMP2), sr(S_TMP2)))
        a("s_add_u32 %s, %s, %s" % (sr(S_TMP2), sr(S_TMP2), sr(S_RING)))
        for g in range(2):
            a("s_add_u32 m0, %s, %d" % (sr(S_RING), u * 32768 + g * 4096))
            a("s_add_u32 %s, %s, %d" % (sr(S_TMP), sr(S_TMP2), g * 4096))
            for n in range(4):
                a.vmem("buffer_load_dwordx4 %s, %s, %s offen offset:%d lds" % (
                    vr(V_DMA + n), sr(srd, 4), sr(S_TMP), n * 1024))

    def k_unit_b(t):
        for g in range(2):
            a("s_add_u32 m0, %s, %d" % (sr(S_RING), t * 32768 + g * 4096))
            a("s_add_u32 %s, %s, %d" % (sr(S_TMP), sr(S_RING), t * 32768 + g * 4096))
            for n in range(4):
                a.vmem("buffer_load_dwordx4 %s, %s, %s offen offset:%d%s lds" % (
                    vr(V_DMA + n), sr(S_K, 4), sr(S_TMP), n * 1024, " nt" if OPT["nt"] else ""))

    def v_unit_b(t):
        a("s_add_u32 %s, %s, %d" % (sr(S_PFV), sr(S_RING), t * 32768))
        for x in v_unit_regs(t):
            if x.startswith("buffer"):
                a.vmem(x)
            else:
                a(x)

    def qproj(NX, NCG, off):
        done = set()
        isB = NX == 2

        def first():
            if isB:
                v_unit_b(0)
                k_unit_b(0)
                v_unit_b(1)
            else:
                kv_unit(0)
                kv_unit(1)

        def on_free(cdone, busy):
            if isB:
                if cdone == 0:
                    k_unit_b(1)
                if cdone == 1:
                    v_unit_b(2)
                if 2 not in done and cdone >= 2 and not any(x in busy for x in range(0, 4)):
                    done.add(2)
                    k_unit_b(2)
                    v_unit_b(3)
                return
            for u, slots in ((2, range(0, 4)), (3, range(4, 8))):
                if u not in done and not any(x in busy for x in slots) and (u == 2 or 2 in done):
                    done.add(u)
                    kv_unit(u)
        V_FR, V_ACC = 64, 192
        gemm_lds(a, NX, NCG, 262144, 8192, STG, 12, off, VB, V_FR, V_ACC, S_X, S_W, S_XOFF, S_WOFF, 46, 46, first, on_free)
        a("s_barrier")
        on_free(7, [])
        if isB:
            a("s_mov_b32 %s, 3" % sr(S_TK))
            a("s_mov_b32 %s, 4" % sr(S_TV))
            a("s_add_u32 %s, %s, 98304" % (sr(S_TMP), sr(S_RING)))
            a("v_add_u32 %s, %s, %s" % (vr(V_VW), sr(S_TMP), vr(V_L16)))
            a("v_add_u32 %s, 65536, %s" % (vr(V_VA), vr(V_VA)))
        else:
            a("s_xor_b32 %s, %s, 2" % (sr(S_PF), sr(S_XORT)))
            a("s_lshl_b32 %s, %s, 15" % (sr(S_PF), sr(S_PF)))
            a("s_add_u32 %s, %s, %s" % (sr(S_PF), sr(S_PF), sr(S_RING)))
        stamp(a, 1)
        a("s_lshl_b32 %s, s47, 7" % sr(S_TMP))
        a("v_xor_b32 v29, %s, %s" % (sr(S_TMP), vr(V_QA0)))
        a("s_lshl_b32 %s, s46, 14" % sr(S_TMP))
        a("s_add_u32 %s, %s, %d" % (sr(S_TMP), sr(S_TMP), SCR))
        a("v_add_u32 v29, %s, v29" % sr(S_TMP))
        a("s_nop 7")
        k = 0
        for dbl in range(2):
            for half in range(2):
                x = dbl * 64 + half * 32
                if x:
                    a("v_xor_b32 v30, %d, v29" % x)
                for qbl in range(2):
                    src = V_ACC + (dbl * 2 + qbl) * 16 + half * 8
                    dst = 64 + k * 4
                    k += 1
                    for e in range(4):
                        a("v_cvt_pk_bf16_f32 %s, %s, %s" % (vr(dst + e), vr(src + 2 * e), vr(src + 2 * e + 1)))
                    a("ds_write_b128 %s, %s offset:%d" % ("v30" if x else "v29", vr(dst, 4), qbl * 8192))
        a("s_waitcnt lgkmcnt(0)")
        a("s_barrier")
        a("v_add_u32 v29, %d, %s" % (SCR, vr(V_QA0)))
        for s in range(8):
            if s:
                a("v_xor_b32 v30, %d, v29" % (32 * s))
            for qb in range(4):
                a("ds_read_b128 %s, %s offset:%d" % (vr(V_Q + (qb * 8 + s) * 4, 4), "v30" if s else "v29", qb * 8192))
            if s % 2 == 1:
                a("s_waitcnt lgkmcnt(4)")
        a("s_waitcnt lgkmcnt(0)")
        a("s_barrier")
        stamp(a, 2)

    qproj(2, 1, 4)
    init_pass(a, 2)
    tile_loop_b(a, "b")
    a("s_nop 0")
    stamp(a, 3)
    combine(a, 0, S_OOFF0, oneshot=False)
    stamp(a, 4)
    for r in range(64):
        a("v_mov_b32 %s, %s" % (vr(V_Q + r), vr(V_Q + 64 + r)))
    init_pass(a, 2)
    tile_loop_b(a, "c")
    stamp(a, 5)
    combine(a, 0, S_OOFF1, oneshot=True)
    stamp(a, 6)
    a("s_endpgm")
    for tg in "bc":
        for u in range(4):
            slow_path(a, 0, 0, "%s%d0" % (tg, u))
            slow_path(a, 1, 64, "%s%d1" % (tg, u))

    a.label("L_typeA")
    qproj(1, 2, 8)
    init_pass(a, 4)
    tile_loop(a, 4, "a")
    stamp(a, 5)
    combine(a, 0, S_OOFF0, oneshot=True)
    combine(a, 2, S_OOFF1, oneshot=True)
    stamp(a, 6)
    a.label("L_end1")
    a("s_endpgm")
    for j in range(4):
        slow_path(a, j, 64 * j, "a%d" % j)


def kernel2(a):
    a.label("oproj_kernel")
    a("s_cmp_ge_u32 s2, 256")
    a("s_cbranch_scc1 L_end2")
    a("s_load_dwordx2 s[48:49], s[0:1], 32")
    a("s_load_dwordx2 s[50:51], s[0:1], 72")
    a("s_load_dwordx2 s[54:55], s[0:1], 96")
    a("v_lshrrev_b32 v1, 6, v0")
    a("v_and_b32 v0, 63, v0")
    a("v_readfirstlane_b32 %s, v1" % sr(S_WAVE))
    a("s_and_b32 s3, s2, 7")
    a("s_lshr_b32 s45, s2, 3")
    a("s_lshr_b32 s56, s45, 4")
    a("s_bfe_u32 s57, s45, 0x20002")
    a("s_and_b32 s58, s45, 3")
    a("s_lshr_b32 s46, %s, 1" % sr(S_WAVE))
    a("s_and_b32 s47, %s, 1" % sr(S_WAVE))
    a("s_lshl_b32 %s, %s, 11" % (sr(S_W2K), sr(S_WAVE)))
    a("s_waitcnt lgkmcnt(0)")
    a("s_cmp_eq_u32 s56, 0")
    a("s_cselect_b32 %s, s48, s50" % sr(S_W))
    a("s_cselect_b32 %s, s49, s51" % sr(S_W + 1))
    a("s_mov_b32 %s, 4194304" % sr(S_W + 2))
    a("s_mov_b32 %s, 0x00020000" % sr(S_W + 3))
    a("s_mov_b32 %s, s54" % sr(S_X))
    a("s_mov_b32 %s, s55" % sr(S_X + 1))
    a("s_mov_b32 %s, %d" % (sr(S_X + 2), 24 << 20))
    a("s_mov_b32 %s, 0x00020000" % sr(S_X + 3))
    stamp_srd(a, "s54", "s55")
    stamp(a, 0, base=65536)
    a("s_lshl_b32 %s, s56, 22" % sr(S_XOFF))
    a("s_lshl_b32 s59, s57, 20")
    a("s_add_u32 %s, %s, s59" % (sr(S_XOFF), sr(S_XOFF)))
    a("s_lshl_b32 s59, s3, 10")
    a("s_add_u32 %s, %s, s59" % (sr(S_XOFF), sr(S_XOFF)))
    a("s_lshl_b32 %s, s3, 19" % sr(S_WOFF))
    a("s_lshl_b32 s59, s58, 8")
    a("s_add_u32 %s, %s, s59" % (sr(S_WOFF), sr(S_WOFF)))
    a("s_lshl_b32 s82, s57, 1")
    a("s_add_u32 s82, s82, s58")
    a("s_and_b32 s82, s82, %d" % (7 if OPT["rot"] else 0))
    VB = 8
    gemm_lds_setup(a, 0, 8192, 1024, 47, VB)
    V_FR, V_ACC = 32, 96
    gemm_lds(a, 2, 1, 524288, 1024, 0, 20, 0, VB, V_FR, V_ACC, S_X, S_W, S_XOFF, S_WOFF, 46, 46)
    stamp(a, 1, base=65536)
    a("s_lshl_b32 s59, s45, 3")
    a("s_add_u32 s59, s59, s3")
    a("s_lshl_b32 s59, s59, 16")
    a("s_lshl_b32 s60, %s, 14" % sr(S_WAVE))
    a("s_add_u32 s59, s59, s60")
    a("s_add_u32 s59, s59, %d" % (8 << 20))
    a("v_lshlrev_b32 v1, 4, v0")
    a("s_nop 7")
    a("s_nop 3")
    for k in range(16):
        if k and k % 4 == 0:
            a("s_add_u32 s59, s59, 4096")
        a("buffer_store_dwordx4 %s, v1, %s, s59 offen offset:%d" % (vr(V_ACC + 4 * k, 4), sr(S_X, 4), (k % 4) * 1024))
    stamp(a, 2, base=65536)
    a.label("L_end2")
    a("s_endpgm")


def kernel3(a):
    a.label("oreduce_kernel")
    a("s_cmp_ge_u32 s2, 256")
    a("s_cbranch_scc1 L_end3")
    a("s_load_dwordx2 s[4:5], s[0:1], 80")
    a("s_load_dwordx2 s[8:9], s[0:1], 96")
    a("v_lshrrev_b32 v1, 6, v0")
    a("v_and_b32 v0, 63, v0")
    a("v_readfirstlane_b32 s24, v1")
    a("s_lshr_b32 s16, s2, 3")
    a("s_and_b32 s17, s2, 7")
    a("s_lshl_b32 s17, s17, 2")
    a("s_add_u32 s17, s17, s24")
    a("s_lshl_b32 s18, s16, 19")
    a("s_lshl_b32 s19, s17, 11")
    a("s_add_u32 s18, s18, s19")
    a("s_add_u32 s18, s18, %d" % (8 << 20))
    a("v_lshlrev_b32 v1, 4, v0")
    a("s_waitcnt lgkmcnt(0)")
    a("s_mov_b32 s6, 1048576")
    a("s_mov_b32 s7, 0x00020000")
    a("s_mov_b32 s10, %d" % (24 << 20))
    a("s_mov_b32 s11, 0x00020000")
    for k in range(8):
        a("buffer_load_dwordx4 %s, v1, s[8:11], s18 offen" % vr(8 + 8 * k, 4))
        a("buffer_load_dwordx4 %s, v1, s[8:11], s18 offen offset:1024" % vr(12 + 8 * k, 4))
        a("s_add_u32 s18, s18, 65536")
    a("s_bfe_u32 s20, s16, 0x20002")
    a("s_lshl_b32 s20, s20, 7")
    a("s_lshr_b32 s21, s17, 4")
    a("s_lshl_b32 s21, s21, 6")
    a("s_add_u32 s20, s20, s21")
    a("s_bfe_u32 s21, s17, 0x10001")
    a("s_lshl_b32 s21, s21, 5")
    a("s_add_u32 s20, s20, s21")
    a("s_lshl_b32 s20, s20, 11")
    a("s_lshr_b32 s21, s16, 4")
    a("s_lshl_b32 s21, s21, 10")
    a("s_add_u32 s20, s20, s21")
    a("s_and_b32 s21, s16, 3")
    a("s_lshl_b32 s21, s21, 8")
    a("s_add_u32 s20, s20, s21")
    a("s_bfe_u32 s21, s17, 0x10003")
    a("s_lshl_b32 s21, s21, 7")
    a("s_add_u32 s20, s20, s21")
    a("s_bfe_u32 s21, s17, 0x10002")
    a("s_lshl_b32 s21, s21, 6")
    a("s_add_u32 s20, s20, s21")
    a("s_and_b32 s21, s17, 1")
    a("s_lshl_b32 s21, s21, 5")
    a("s_add_u32 s20, s20, s21")
    a("v_and_b32 v2, 31, v0")
    a("v_lshlrev_b32 v2, 11, v2")
    a("v_lshrrev_b32 v3, 5, v0")
    a("v_lshl_add_u32 v2, v3, 4, v2")
    for k in range(1, 8):
        a("s_waitcnt vmcnt(%d)" % (14 - 2 * k))
        for e in range(8):
            a("v_add_f32 %s, %s, %s" % (vr(8 + e), vr(8 + e), vr(8 + 8 * k + e)))
    for e in range(4):
        a("v_cvt_pk_bf16_f32 %s, %s, %s" % (vr(4 + e), vr(8 + 2 * e), vr(9 + 2 * e)))
    a("buffer_store_dwordx4 v[4:7], v2, s[4:7], s20 offen")
    a.label("L_end3")
    a("s_endpgm")


def descriptor(name, vgpr, accum, sgpr=102):
    return """.amdhsa_kernel %s
  .amdhsa_next_free_vgpr %d
  .amdhsa_next_free_sgpr %d
  .amdhsa_accum_offset %d
  .amdhsa_group_segment_fixed_size 0
  .amdhsa_kernarg_size 104
  .amdhsa_user_sgpr_count 2
  .amdhsa_user_sgpr_kernarg_segment_ptr 1
  .amdhsa_system_sgpr_workgroup_id_x 1
.end_amdhsa_kernel
""" % (name, vgpr, sgpr, accum)


def main():
    out = HEADER
    out += "; @launch kernel=attn_kernel grid=(256,1,1) block=(256,1,1) lds=%d\n" % LDS1
    if OPT["k2"]:
        out += "; @launch kernel=oproj_kernel grid=(256,1,1) block=(256,1,1) lds=163840\n"
        out += "; @launch kernel=oreduce_kernel grid=(256,1,1) block=(256,1,1) lds=0\n"
    out += '.amdgcn_target "amdgcn-amd-amdhsa--gfx950"\n.text\n'
    a = Asm()
    out += ".globl attn_kernel\n.p2align 8\n.type attn_kernel,@function\n"
    kernel1(a)
    out += a.text()
    a = Asm()
    out += ".globl oproj_kernel\n.p2align 8\n.type oproj_kernel,@function\n"
    kernel2(a)
    out += a.text()
    a = Asm()
    out += ".globl oreduce_kernel\n.p2align 8\n.type oreduce_kernel,@function\n"
    kernel3(a)
    out += a.text()
    out += '.section .rodata,"a"\n.p2align 6\n'
    out += descriptor("attn_kernel", 512, 256)
    out += ".p2align 6\n"
    out += descriptor("oproj_kernel", 160, 160)
    out += ".p2align 6\n"
    out += descriptor("oreduce_kernel", 72, 72, 32)
    open(sys.argv[1], "w").write(out)


main()
```

```python
import math, sys

NAME = "concat_heads__gqa_block_cached__mha_block_cached__near_ridge"

HEADER = """; Kernarg layout for this problem (104 bytes, ptrs only, base s[0:1]):
"""

OPT = dict(nt=0, nocompute=0, k2=1, stamp=0, qdma=1, rot=1, xort=2, rv=3, qreg=1, kvlate=0, norot=0, fine=0, fuse=1, spin=20000)
for arg in sys.argv[2:]:
    k, v = arg.split("=")
    OPT[k] = int(v)


def f32hex(x):
    import struct
    return "0x%08x" % struct.unpack("<I", struct.pack("<f", x))[0]


class Asm:
    def __init__(self):
        self.lines = []
        self.vm = 0
        self.uid = 0

    def __call__(self, s):
        self.lines.append("    " + s)

    def label(self, l):
        self.lines.append(l + ":")

    def c(self, s):
        self.lines.append("    ; " + s)

    def vmem(self, s):
        self(s)
        self.vm += 1
        return self.vm - 1

    def wait_vm(self, idx):
        n = self.vm - idx - 1
        assert 0 <= n
        n = min(n, 63)
        self("s_waitcnt vmcnt(%d)" % n)

    def text(self):
        return "\n".join(self.lines) + "\n"


def vr(b, n=1):
    return "v%d" % b if n == 1 else "v[%d:%d]" % (b, b + n - 1)


def ar(b, n=1):
    return "a%d" % b if n == 1 else "a[%d:%d]" % (b, b + n - 1)


def sr(b, n=1):
    return "s%d" % b if n == 1 else "s[%d:%d]" % (b, b + n - 1)


def interleave(a, mfmas, fillers, lead=0):
    n = len(mfmas)
    gaps = n - lead
    done = 0
    for i, m in enumerate(mfmas):
        a(m)
        if i >= lead and gaps > 0:
            want = (len(fillers) * (i - lead + 1) + gaps - 1) // gaps
            while done < want:
                emit(a, fillers[done])
                done += 1
    while done < len(fillers):
        emit(a, fillers[done])
        done += 1


def emit(a, f):
    if callable(f):
        f()
    elif f.startswith("buffer_"):
        a.vmem(f)
    elif "\n" in f:
        for x in f.split("\n"):
            emit(a, x)
    elif f.endswith(":"):
        a.label(f[:-1])
    else:
        a(f)


SCALE = 128 ** -0.5
CEXP = SCALE * math.log2(math.e)
TLAZY = 8.0
RING = 32768
SCR = 131072
STG = 65536
LDS1 = 163840
ITEM_JUMP = 4 * 32 * 262144 - 262144
SEL_LO = 0x05040100
SEL_HI = 0x07060302

S_K, S_V, S_X, S_W, S_O = 4, 8, 12, 16, 20
S_WAVE, S_TYPE, S_PF, S_T, S_RING = 24, 25, 26, 27, 28
S_XOFF, S_WOFF, S_C, S_SELLO, S_SELHI = 29, 30, 31, 32, 33
S_OOFF0, S_OOFF1, S_PASS, S_TMP, S_TMP2, S_M0K, S_M0V, S_FIRST = 34, 35, 36, 37, 38, 39, 40, 41
S_T8, S_JUMP, S_OOFF = 42, 43, 44
S_W2K, S_TMP3 = 80, 81
S_PFV, S_TK, S_TV, S_XORT = 85, 86, 87, 88
S_P = 48

V_LANE, V_KA, V_VA, V_TA, V_TB = 0, 1, 2, 3, 4
V_DMA = 5
V_MC = 9
V_L = 13
V_TMAX = 17
V_T0 = 18
V_OVOFF = 26
V_L16 = 27
V_QA0 = 28
V_VW = 31
V_VF = 32
V_KF = 64
V_S = 96
V_Q = 128
V_CM = 192
V_KAD = 224
V_VAD = 232
V_ONES = 240
A_L = 128
S_THR = 41
S_D = 68
S_OUT = 72
S_OFLAG = 89
V_NONCE = 244
FLAG_O = 24 << 20
FLAG_P = (24 << 20) + 8192


def gemm_lds_setup(a, L, XS, WS, s_dh, vb):
    vx0, vx1, vw0, vw1, px, pw, t0, t1 = vb, vb + 1, vb + 2, vb + 3, vb + 4, vb + 8, vb + 12, vb + 13
    a("v_lshrrev_b32 %s, 4, %s" % (vr(t0), vr(L)))
    a("v_and_b32 %s, 7, %s" % (vr(t1), vr(L)))
    a("v_xor_b32 %s, %s, %s" % (vr(t1), vr(t1), vr(t0)))
    a("v_lshlrev_b32 %s, 4, %s" % (vr(t1), vr(t1)))
    a("v_lshrrev_b32 %s, 3, %s" % (vr(t0), vr(L)))
    a("s_lshl_b32 %s, %s, 4" % (sr(S_TMP), sr(S_WAVE)))
    a("v_add_u32 %s, %s, %s" % (vr(t0), sr(S_TMP), vr(t0)))
    a("s_mov_b32 %s, %d" % (sr(S_TMP), XS))
    a("v_mul_lo_u32 %s, %s, %s" % (vr(t0), vr(t0), sr(S_TMP)))
    a("v_add_u32 %s, %s, %s" % (vr(vx0), vr(t0), vr(t1)))
    a("v_xor_b32 %s, 64, %s" % (vr(t1), vr(t1)))
    a("v_add_u32 %s, %s, %s" % (vr(vx1), vr(t0), vr(t1)))
    a("v_add_u32 %s, %d, %s" % (vr(vx1), 8 * XS - 1024, vr(vx1)))
    a("v_lshrrev_b32 %s, 4, %s" % (vr(t0), vr(L)))
    a("v_and_b32 %s, 15, %s" % (vr(t1), vr(L)))
    a("v_lshlrev_b32 %s, 2, %s" % (vr(vw0), vr(t0)))
    a("v_xor_b32 %s, %s, %s" % (vr(t1), vr(t1), vr(vw0)))
    a("s_lshl_b32 %s, %s, 1" % (sr(S_TMP), sr(S_WAVE)))
    a("s_and_b32 %s, %s, 3" % (sr(S_TMP), sr(S_TMP)))
    a("v_xor_b32 %s, %s, %s" % (vr(t1), sr(S_TMP), vr(t1)))
    a("v_lshlrev_b32 %s, 4, %s" % (vr(t1), vr(t1)))
    a("s_lshl_b32 %s, %s, 3" % (sr(S_TMP), sr(S_WAVE)))
    a("v_add_u32 %s, %s, %s" % (vr(t0), sr(S_TMP), vr(t0)))
    a("s_mov_b32 %s, %d" % (sr(S_TMP), WS))
    a("v_mul_lo_u32 %s, %s, %s" % (vr(t0), vr(t0), sr(S_TMP)))
    a("v_add_u32 %s, %s, %s" % (vr(vw0), vr(t0), vr(t1)))
    a("v_xor_b32 %s, 16, %s" % (vr(t1), vr(t1)))
    a("v_add_u32 %s, %s, %s" % (vr(vw1), vr(t0), vr(t1)))
    a("v_add_u32 %s, %d, %s" % (vr(vw1), 4 * WS - 1024, vr(vw1)))
    a("v_bfe_u32 %s, %s, 1, 3" % (vr(t0), vr(L)))
    a("v_lshrrev_b32 %s, 5, %s" % (vr(t1), vr(L)))
    a("v_xor_b32 %s, %s, %s" % (vr(t0), vr(t0), vr(t1)))
    a("v_lshlrev_b32 %s, 4, %s" % (vr(t0), vr(t0)))
    a("v_and_b32 %s, 31, %s" % (vr(t1), vr(L)))
    a("v_lshl_add_u32 %s, %s, 7, %s" % (vr(px), vr(t1), vr(t0)))
    for k in range(1, 4):
        a("v_xor_b32 %s, %d, %s" % (vr(px + k), 32 * k, vr(px)))
    a("v_bfe_u32 %s, %s, 4, 1" % (vr(t0), vr(L)))
    a("v_and_b32 %s, 1, %s" % (vr(t1), vr(L)))
    a("v_lshl_add_u32 %s, %s, 1, %s" % (vr(t0), vr(t0), vr(t1)))
    a("v_lshrrev_b32 %s, 5, %s" % (vr(t1), vr(L)))
    a("v_lshlrev_b32 %s, 1, %s" % (vr(pw + 1), vr(t1)))
    a("v_xor_b32 %s, %s, %s" % (vr(t0), vr(t0), vr(pw + 1)))
    a("v_bfe_u32 %s, %s, 2, 2" % (vr(pw + 1), vr(L)))
    a("v_lshl_add_u32 %s, %s, 2, %s" % (vr(t0), vr(pw + 1), vr(t0)))
    a("v_lshlrev_b32 %s, 4, %s" % (vr(t0), vr(t0)))
    a("v_lshl_add_u32 %s, %s, 3, %s" % (vr(t1), vr(t1), vr(pw + 1)))
    a("v_lshl_add_u32 %s, %s, 8, %s" % (vr(t0), vr(t1), vr(t0)))
    a("v_bfe_u32 %s, %s, 1, 1" % (vr(t1), vr(L)))
    a("v_lshl_add_u32 %s, %s, 3, %s" % (vr(t0), vr(t1), vr(t0)))
    a("s_lshl_b32 %s, %s, 7" % (sr(S_TMP), sr(s_dh)))
    a("v_xor_b32 %s, %s, %s" % (vr(pw), sr(S_TMP), vr(t0)))
    a("v_xor_b32 %s, 16, %s" % (vr(pw + 1), vr(pw)))
    a("v_xor_b32 %s, 64, %s" % (vr(pw + 2), vr(pw)))
    a("v_xor_b32 %s, 80, %s" % (vr(pw + 3), vr(pw)))


def gemm_lds(a, NX, NCG, XUS, WS, base, NSLOT, off, vb, v_fr, v_acc, srd_x, srd_w, s_xoff, s_woff, s_xsel, s_wsel,
             idle=None, extra=None, xflags=""):
    vx0, vx1, vw0, vw1, px, pw, t0, t1 = vb, vb + 1, vb + 2, vb + 3, vb + 4, vb + 8, vb + 12, vb + 13
    NU = NX + 2 * NCG
    NCH = 8
    total = NU * NCH
    if base is None:
        tbl = [w * 32768 + 16384 for w in range(4)] + [w * 32768 + 24576 for w in range(4)] + [SCR + i * 8192 for i in range(4)]
    else:
        tbl = [base + i * 8192 for i in range(NSLOT)]
    slot_addr = lambda u: tbl[(u + off) % NSLOT]
    lastop = {}

    def issue(u):
        c, k = divmod(u, NU)
        o = []
        if k == 0:
            o += ["s_lshl_b32 s83, s82, 7", "s_add_u32 s83, s83, %s" % sr(s_xoff), "s_mul_i32 s84, s82, %d" % (64 * WS),
                  "s_add_u32 s84, s84, %s" % sr(s_woff), "s_add_u32 s82, s82, 1", "s_and_b32 s82, s82, 7"]
        o.append("s_add_u32 m0, %s, %d" % (sr(S_W2K), slot_addr(u)))
        if k < NX:
            o.append("s_add_u32 %s, s83, %d" % (sr(S_TMP), k * XUS))
            v0_, v1_, srd, fl = vx0, vx1, srd_x, xflags
        else:
            cg, half = divmod(k - NX, 2)
            o.append("s_add_u32 %s, s84, %d" % (sr(S_TMP), (half * 32) * WS + cg * 256))
            v0_, v1_, srd, fl = vw0, vw1, srd_w, ""
        o.append("buffer_load_dwordx4 %s, %s, %s offen%s lds" % (vr(v0_), sr(srd, 4), sr(S_TMP), fl))
        o.append("buffer_load_dwordx4 %s, %s, %s offen offset:1024%s lds" % (vr(v1_), sr(srd, 4), sr(S_TMP), fl))
        o.append(lambda c=c: lastop.__setitem__(c, a.vm - 1))
        return o

    fstamp(a)
    nxt = min(NSLOT, total)
    for u in range(nxt):
        for x in issue(u):
            emit(a, x)
    if idle:
        idle()
    XF, WF = v_fr, v_fr + 32
    fstamp(a)
    for c in range(NCH):
        a.wait_vm(lastop[c])
        fstamp(a)
        a("s_barrier")
        fill = []
        if c >= 1:
            for _ in range(NU):
                if nxt < total:
                    fill += issue(nxt)
                    nxt += 1
        if extra:
            fill += extra(c, [((u + off) % NSLOT) for u in range(c * NU, total)])
        u0 = c * NU
        if NX == 2:
            a("s_mov_b32 %s, %d" % (sr(S_TMP2), slot_addr(u0)))
            a("s_cmp_eq_u32 %s, 0" % sr(s_xsel))
            a("s_cselect_b32 %s, %s, %d" % (sr(S_TMP2), sr(S_TMP2), slot_addr(u0 + 1)))
            xb = sr(S_TMP2)
        else:
            xb = "%d" % slot_addr(u0)
        reads = [[], []]
        for hf in range(2):
            rd = reads[hf]
            if NCG == 2:
                rd.append("s_mov_b32 %s, %d" % (sr(S_TMP3), slot_addr(u0 + NX + hf)))
                rd.append("s_cmp_eq_u32 %s, 0" % sr(s_wsel))
                rd.append("s_cselect_b32 %s, %s, %d" % (sr(S_TMP3), sr(S_TMP3), slot_addr(u0 + NX + 2 + hf)))
                wb = sr(S_TMP3)
            else:
                wb = "%d" % slot_addr(u0 + NX + hf)
            for k2 in range(2):
                s_ = hf * 2 + k2
                rd.append("v_add_u32 %s, %s, %s" % (vr(t0), xb, vr(px + s_)))
                for qbl in range(2):
                    rd.append("ds_read_b128 %s, %s offset:%d" % (vr(XF + (qbl * 4 + s_) * 4, 4), vr(t0), qbl * 4096))
            for dbl in range(2):
                for hr in range(2):
                    tt = t1 if hr else t0
                    rd.append("v_add_u32 %s, %s, %s" % (vr(tt), wb, vr(pw + dbl * 2 + hr)))
                    for k2 in range(2):
                        s_ = hf * 2 + k2
                        rd.append("ds_read_b64_tr_b16 %s, %s offset:%d" % (vr(WF + (dbl * 4 + s_) * 4 + 2 * hr, 2), vr(tt), k2 * 4096 + hr * 1024))
        for x in reads[0]:
            a(x)
        h = len(fill) // 3
        for x in fill[:h]:
            emit(a, x)
        a("s_waitcnt lgkmcnt(0)")
        interleave(a, mf(0, c, XF, WF, v_acc), reads[1])
        a("s_waitcnt lgkmcnt(0)")
        interleave(a, mf(1, c, XF, WF, v_acc), fill[h:])


def mf(hf, c, XF, WF, v_acc):
    out = []
    for k2 in range(2):
        s_ = hf * 2 + k2
        for dbl in range(2):
            for qbl in range(2):
                acc = vr(v_acc + (dbl * 2 + qbl) * 16, 16)
                out.append("v_mfma_f32_32x32x16_bf16 %s, %s, %s, %s" % (acc, vr(WF + (dbl * 4 + s_) * 4, 4), vr(XF + (qbl * 4 + s_) * 4, 4),
                                                                       "0" if (c == 0 and s_ == 0) else acc))
    return out


def dma_unit(a, srd, s_m0_base, slot_imm, s_goff, lst=None):
    out = []
    nt = " nt" if slot_imm else ""
    for g in range(2):
        if g == 0:
            out.append("s_mov_b32 m0, %s" % sr(s_m0_base))
            out.append("s_mov_b32 %s, %s" % (sr(S_TMP), sr(s_goff)))
        else:
            out.append("s_add_u32 m0, %s, 4096" % sr(s_m0_base))
            out.append("s_add_u32 %s, %s, 4096" % (sr(S_TMP), sr(s_goff)))
        for n in range(4):
            out.append("buffer_load_dwordx4 %s, %s, %s offen offset:%d%s lds" % (vr(V_DMA + n), sr(srd, 4), sr(S_TMP), n * 1024, nt))
    return out


def softmax_ops(j, sb, tag):
    f = []
    t0, t1, t2, t3, t4 = V_T0, V_T0 + 1, V_T0 + 2, V_T0 + 3, V_T0 + 4
    s = lambda i: vr(sb + i)
    f.append("v_max3_f32 %s, %s, %s, %s" % (vr(t0), s(0), s(1), s(2)))
    f.append("v_max3_f32 %s, %s, %s, %s" % (vr(t1), s(3), s(4), s(5)))
    f.append("v_max3_f32 %s, %s, %s, %s" % (vr(t2), s(6), s(7), s(8)))
    f.append("v_max3_f32 %s, %s, %s, %s" % (vr(t3), s(9), s(10), s(11)))
    f.append("v_max3_f32 %s, %s, %s, %s" % (vr(t4), s(12), s(13), s(14)))
    f.append("v_max3_f32 %s, %s, %s, %s" % (vr(t0), vr(t0), vr(t1), s(15)))
    f.append("v_max3_f32 %s, %s, %s, %s" % (vr(t2), vr(t2), vr(t3), vr(t4)))
    f.append("v_max_f32 %s, %s, %s" % (vr(V_TMAX), vr(t0), vr(t2)))
    f.append("v_cmp_lt_f32 vcc, %s, %s" % (sr(S_THR), vr(V_TMAX)))
    f.append("s_cbranch_vccnz L_slow_%s\nL_back_%s:" % (tag, tag))
    for i in range(16):
        f.append("v_exp_f32 %s, %s" % (s(i), s(i)))
        if i >= 3 and i % 2 == 1:
            p = (i - 3) // 2
            f.append("v_cvt_pk_bf16_f32 %s, %s, %s" % (s(p), s(2 * p), s(2 * p + 1)))
    f.append("s_nop 0")
    f.append("v_cvt_pk_bf16_f32 %s, %s, %s" % (s(7), s(14), s(15)))
    return f


def slow_path(a, j, sb, tag):
    t0, t1, t2 = V_T0, V_T0 + 1, V_T0 + 2
    a.label("L_slow_%s" % tag)
    a("v_mov_b32 %s, %s" % (vr(t0), vr(V_TMAX)))
    a("v_mov_b32 %s, %s" % (vr(t1), vr(V_TMAX)))
    a("s_nop 1")
    a("v_permlane32_swap_b32 %s, %s" % (vr(t0), vr(t1)))
    a("s_nop 1")
    a("v_max_f32 %s, %s, %s" % (vr(t0), vr(t0), vr(t1)))
    a("s_cmp_eq_u32 %s, 0" % sr(S_T))
    a("s_cbranch_scc1 L_slow2_%s" % tag)
    a("v_max_f32 %s, 0, %s" % (vr(t0), vr(t0)))
    a("v_sub_f32 %s, 0, %s" % (vr(t1), vr(t0)))
    a("v_exp_f32 %s, %s" % (vr(t1), vr(t1)))
    a("s_nop 7")
    a("s_nop 7")
    regs = list(range(j * 64, j * 64 + 64)) + list(range(A_L + 16 * j, A_L + 16 * j + 4))
    for r in range(0, len(regs), 4):
        for q in range(4):
            a("v_accvgpr_read_b32 %s, %s" % (vr(t2 + q), ar(regs[r + q])))
        for q in range(4):
            a("v_mul_f32 %s, %s, %s" % (vr(t2 + q), vr(t2 + q), vr(t1)))
        for q in range(4):
            a("v_accvgpr_write_b32 %s, %s" % (ar(regs[r + q]), vr(t2 + q)))
    a.label("L_slow2_%s" % tag)
    for i in range(16):
        a("v_sub_f32 %s, %s, %s" % (vr(sb + i), vr(sb + i), vr(t0)))
    for i in range(16):
        a("v_sub_f32 %s, %s, %s" % (vr(V_CM + 16 * j + i), vr(V_CM + 16 * j + i), vr(t0)))
    a("s_nop 1")
    a("s_branch L_back_%s" % tag)


def qk_mfmas(j, sb):
    out = []
    for s in range(8):
        d = vr(sb, 16)
        out.append("v_mfma_f32_32x32x16_bf16 %s, %s, %s, %s" % (d, vr(V_KF + 4 * s, 4), vr(V_Q + (j * 8 + s) * 4, 4), vr(V_CM + 16 * j, 16) if s == 0 else d))
    return out


def pv_mfmas(j, sb):
    out = []
    for ks in range(2):
        for db in range(4):
            o = ar(j * 64 + db * 16, 16)
            out.append("v_mfma_f32_32x32x16_bf16 %s, %s, %s, %s" % (o, vr(V_VF + (db * 2 + ks) * 4, 4), vr(sb + 4 * ks, 4), o))
        l = ar(A_L + 16 * j, 16)
        out.append("v_mfma_f32_32x32x16_bf16 %s, %s, %s, %s" % (l, vr(V_ONES, 4), vr(sb + 4 * ks, 4), l))
    return out


def stamp(a, idx, srd=None, base=0):
    if not OPT["stamp"]:
        return
    a("s_memrealtime s[90:91]")
    a("s_memtime s[94:95]")
    a("s_waitcnt lgkmcnt(0)")
    a("s_lshl_b32 s92, s2, 2")
    a("s_add_u32 s92, s92, %s" % sr(S_WAVE))
    a("s_lshl_b32 s92, s92, 6")
    a("s_add_u32 s92, s92, %d" % ((16 << 20) + base + idx * 4))
    a("v_mov_b32 v25, s90")
    a("v_mov_b32 v24, 0")
    a("buffer_store_dword v25, v24, s[96:99], s92 offen")
    a("v_mov_b32 v23, s94")
    a("buffer_store_dword v23, v24, s[96:99], s92 offen offset:32")
    a.vm += 2


FINE = [0]
def fstamp(a):
    if not OPT["fine"]:
        return
    a("s_memtime s[90:91]")
    a("s_waitcnt lgkmcnt(0)")
    a("v_writelane_b32 v250, s90, %d" % FINE[0])
    FINE[0] += 1


def fdump(a):
    if not OPT["fine"]:
        return
    a("s_lshl_b32 s92, s2, 2")
    a("s_add_u32 s92, s92, %s" % sr(S_WAVE))
    a("s_lshl_b32 s92, s92, 8")
    a("s_add_u32 s92, s92, %d" % (29 << 20))
    a("v_lshlrev_b32 v251, 2, v0")
    a("buffer_store_dword v250, v251, s[96:99], s92 offen")
    a.vm += 1
    FINE[0] = 1


def stamp_srd(a, lo, hi):
    if not OPT["stamp"]:
        return
    a("s_mov_b32 s96, %s" % lo)
    a("s_mov_b32 s97, %s" % hi)
    a("s_mov_b32 s98, %d" % (32 << 20))
    a("s_mov_b32 s99, 0x00020000")


def dma_list(srd, lds_off, nt):
    out = []
    for g in range(2):
        out.append("s_add_u32 m0, %s, %d" % (sr(S_RING), lds_off + g * 4096))
        if g == 0:
            out.append("s_nop 0")
            so = S_PF
        else:
            out.append("s_add_u32 %s, %s, 4096" % (sr(S_TMP), sr(S_PF)))
            so = S_TMP
        for n in range(4):
            out.append("buffer_load_dwordx4 %s, %s, %s offen offset:%d%s lds" % (vr(V_DMA + n), sr(srd, 4), sr(so), n * 1024, " nt" if nt else ""))
    return out


def k_reads(par):
    return ["ds_read_b128 %s, %s offset:%d" % (vr(V_KF + 4 * s, 4), vr(V_KAD + s), par * 16384) for s in range(8)]


def tile_loop(a, tag, nt):
    a("s_mov_b32 %s, 0" % sr(S_T))
    a.label("L_tile_%s" % tag)
    SB = lambda j: V_S + 16 * (j & 1)
    for par in range(2):
        tg = "%s%d" % (tag, par)
        vreads = []
        for db in range(4):
            for hr in range(2):
                for ks in range(2):
                    vreads.append("ds_read_b64_tr_b16 %s, %s offset:%d" % (
                        vr(V_VF + (db * 2 + ks) * 4 + 2 * hr, 2), vr(V_VAD + db * 2 + hr), 8192 + par * 16384 + ks * 4096 + hr * 2048))
        kd = dma_list(S_K, par * 16384, nt)
        vd = dma_list(S_V, 8192 + par * 16384, nt)
        a("s_waitcnt vmcnt(16) lgkmcnt(0)")
        fa = []
        for i in range(8):
            fa += vreads[2 * i:2 * i + 2]
            if i == 3:
                fa.append("s_waitcnt lgkmcnt(4)")
        interleave(a, qk_mfmas(0, SB(0)), fa[:9] + kd[:3] + fa[9:] + kd[3:6])
        interleave(a, qk_mfmas(1, SB(1)), kd[6:] + ["s_nop 3"] + softmax_ops(0, SB(0), tg + "0"))
        a("s_waitcnt lgkmcnt(0)")
        a("s_nop 0")
        sm1 = softmax_ops(1, SB(1), tg + "1")
        interleave(a, pv_mfmas(0, SB(0)), vd[:6] + ["s_nop 3"] + sm1[:10] + vd[6:9] + sm1[10:22] + vd[9:] + sm1[22:])
        a("s_nop 1")
        tail = ["s_add_u32 %s, %s, 16384" % (sr(S_PF), sr(S_PF)),
                "s_add_u32 %s, %s, 1" % (sr(S_T), sr(S_T)),
                "s_mov_b32 %s, %s" % (sr(S_THR), sr(S_T8)),
                "s_waitcnt vmcnt(24)"] + k_reads(1 - par)
        interleave(a, pv_mfmas(1, SB(1)), tail)
    a("s_cmp_lt_u32 %s, 16" % sr(S_T))
    a("s_cbranch_scc1 L_tile_%s" % tag)
    a("s_waitcnt lgkmcnt(0)")


def init_pass(a):
    for r in range(32):
        a("v_mov_b32 %s, 0" % vr(V_CM + r))
    for r in range(4):
        a("v_mov_b32 %s, 0x3f803f80" % vr(V_ONES + r))
    a("s_mov_b32 %s, 0xff800000" % sr(S_THR))
    a("s_nop 1")
    for r in range(0, 160, 16):
        a("v_mfma_f32_32x32x16_bf16 %s, %s, %s, 0" % (ar(r, 16), vr(V_CM, 4), vr(V_CM, 4)))


def combine2(a, tag, stflags=""):
    t = V_T0
    F, AD, RB, OWN, OUT = 32, 40, 64, 128, 192
    a("s_nop 7")
    a("s_nop 7")
    for j in range(2):
        a("v_accvgpr_read_b32 %s, %s" % (vr(t + 3 + 2 * j), ar(A_L + 16 * j)))
        a("v_sub_f32 %s, 0, %s" % (vr(t + 2 + 2 * j), vr(V_CM + 16 * j)))
    a("s_add_u32 %s, %s, 16384" % (sr(S_TMP), sr(S_RING)))
    a("v_lshlrev_b32 %s, 3, %s" % (vr(AD), vr(V_LANE)))
    a("v_add_u32 %s, %s, %s" % (vr(AD + 1), sr(S_TMP), vr(AD)))
    a("v_add_u32 %s, %s, %s" % (vr(AD + 2), sr(S_RING), vr(V_L16)))
    a("v_xor_b32 %s, 32768, %s" % (vr(AD + 3), vr(AD + 2)))
    a("s_waitcnt vmcnt(0)")
    a("ds_write_b64 %s, %s" % (vr(AD + 1), vr(t + 2, 2)))
    a("ds_write_b64 %s, %s offset:512" % (vr(AD + 1), vr(t + 4, 2)))
    a("v_xor_b32 %s, 32768, %s" % (vr(AD + 1), vr(AD + 1)))
    a("s_cmp_eq_u32 s47, 1")
    a("s_cbranch_scc1 L_cmb1_%s" % tag)
    for e in range(2):
        if e == 1:
            a.label("L_cmb1_%s" % tag)
        k = 0
        for j in range(2):
            for dd in range(2):
                for q in range(4):
                    a("ds_write_b128 %s, %s offset:%d" % (vr(AD + 2), ar(j * 64 + (2 * (1 - e) + dd) * 16 + 4 * q, 4),
                                                         k * 1024))
                    k += 1
        for j in range(2):
            for dd in range(2):
                for r in range(16):
                    a("v_accvgpr_read_b32 %s, %s" % (vr(OWN + (j * 2 + dd) * 16 + r), ar(j * 64 + (2 * e + dd) * 16 + r)))
        if e == 0:
            a("s_branch L_cmb2_%s" % tag)
    a.label("L_cmb2_%s" % tag)
    a("s_waitcnt lgkmcnt(0)")
    a("s_barrier")
    a("ds_read_b64 %s, %s" % (vr(F + 4, 2), vr(AD + 1)))
    a("ds_read_b64 %s, %s offset:512" % (vr(F + 6, 2), vr(AD + 1)))
    for k in range(12):
        a("ds_read_b128 %s, %s offset:%d" % (vr(RB + 4 * k, 4), vr(AD + 3), k * 1024))
    a("s_waitcnt lgkmcnt(12)")
    for j in range(2):
        mo, lo, mp, lp = t + 2 + 2 * j, t + 3 + 2 * j, F + 4 + 2 * j, F + 5 + 2 * j
        fo, fp = F + 2 * j, F + 2 * j + 1
        a("v_max_f32 %s, %s, %s" % (vr(t), vr(mo), vr(mp)))
        a("v_sub_f32 %s, %s, %s" % (vr(fo), vr(mo), vr(t)))
        a("v_sub_f32 %s, %s, %s" % (vr(fp), vr(mp), vr(t)))
        a("v_exp_f32 %s, %s" % (vr(fo), vr(fo)))
        a("v_exp_f32 %s, %s" % (vr(fp), vr(fp)))
        a("s_nop 0")
        a("v_mul_f32 %s, %s, %s" % (vr(t + 1), vr(fo), vr(lo)))
        a("v_fmac_f32 %s, %s, %s" % (vr(t + 1), vr(fp), vr(lp)))
        a("v_rcp_f32 %s, %s" % (vr(t + 1), vr(t + 1)))
        a("s_nop 0")
        a("v_mul_f32 %s, %s, %s" % (vr(fo), vr(fo), vr(t + 1)))
        a("v_mul_f32 %s, %s, %s" % (vr(fp), vr(fp), vr(t + 1)))
    for k in range(12, 16):
        a("ds_read_b128 %s, %s offset:%d" % (vr(RB + 4 * k, 4), vr(AD + 3), k * 1024))
    a("s_add_u32 %s, %s, 4096" % (sr(S_TMP), sr(S_OOFF)))
    for j in range(2):
        for dd in range(2):
            g = j * 2 + dd
            for r in range(16):
                a("v_mul_f32 %s, %s, %s" % (vr(OWN + g * 16 + r), vr(F + 2 * j), vr(OWN + g * 16 + r)))
            a("s_waitcnt lgkmcnt(%d)" % (12 - 4 * g))
            for r in range(16):
                a("v_fmac_f32 %s, %s, %s" % (vr(OWN + g * 16 + r), vr(F + 2 * j + 1), vr(RB + g * 16 + r)))
            for half in range(2):
                o4 = OUT + (g * 2 + half) * 4
                for e in range(4):
                    a("v_cvt_pk_bf16_f32 %s, %s, %s" % (vr(o4 + e), vr(OWN + g * 16 + half * 8 + 2 * e), vr(OWN + g * 16 + half * 8 + 2 * e + 1)))
                a("buffer_store_dwordx4 %s, %s, %s, %s offen offset:%d%s" % (vr(o4, 4), vr(V_L16), sr(S_O, 4),
                                                                           sr(S_TMP if j else S_OOFF), (dd * 2 + half) * 1024, stflags))


def poll(a, tag, s_off, nflags):
    a("v_lshlrev_b32 v246, 3, %s" % vr(V_LANE))
    a("v_min_u32 v246, %d, v246" % ((nflags - 1) * 8))
    a("s_mov_b32 s85, 0")
    a.label("L_poll_%s" % tag)
    a("buffer_load_dwordx2 v[248:249], v246, %s, %s offen sc1" % (sr(S_O, 4), sr(s_off)))
    a("s_add_u32 s85, s85, 1")
    a("s_waitcnt vmcnt(0)")
    a("v_cmp_ne_u64 vcc, v[248:249], %s" % vr(V_NONCE, 2))
    a("s_cbranch_vccz L_pdone_%s" % tag)
    a("s_sleep 4")
    a("s_cmp_lt_u32 s85, %d" % OPT["spin"])
    a("s_cbranch_scc1 L_poll_%s" % tag)
    a.label("L_pdone_%s" % tag)


def signal(a, s_off):
    a("s_waitcnt vmcnt(0)")
    a("v_mov_b32 v246, 0")
    a("s_mov_b64 exec, 1")
    a("buffer_store_dwordx2 %s, v246, %s, %s offen sc1" % (vr(V_NONCE, 2), sr(S_O, 4), sr(s_off)))
    a("s_mov_b64 exec, -1")


def oproj_tail(a):
    a.label("L_tail")
    signal(a, S_OFLAG)
    stamp(a, 6)
    a("s_lshr_b32 s45, s2, 3")
    a("s_bfe_u32 s77, s45, 0x20002")
    a("s_and_b32 s78, s45, 3")
    a("s_xor_b32 s76, %s, 1" % sr(S_TYPE))
    a("s_cmp_eq_u32 s76, 0")
    a("s_cselect_b32 %s, %s, s64" % (sr(S_W), sr(S_P + 8)))
    a("s_cselect_b32 %s, %s, s65" % (sr(S_W + 1), sr(S_P + 9)))
    a("s_lshl_b32 %s, s3, 19" % sr(S_WOFF))
    a("s_lshl_b32 s59, s78, 8")
    a("s_add_u32 %s, %s, s59" % (sr(S_WOFF), sr(S_WOFF)))
    a("s_lshl_b32 s60, s76, 4")
    a("s_and_b32 s59, s45, 15")
    a("s_add_u32 s60, s60, s59")
    a("s_lshl_b32 s61, s76, 3")
    a("s_lshl_b32 s59, s77, 1")
    a("s_add_u32 s61, s61, s59")
    a("s_add_u32 s61, s61, s46")
    a("s_lshl_b32 s61, s61, 3")
    a("s_add_u32 s61, s61, s3")
    a("s_lshl_b32 s61, s61, 3")
    a("s_lshl_b32 %s, s61, 13" % sr(S_XOFF))
    a("s_lshl_b32 s61, s61, 3")
    a("s_add_u32 s61, s61, %d" % FLAG_O)
    VB = 8
    vw0, vw1, pw = VB + 2, VB + 3, VB + 8
    PWH = 28
    gemm_lds_setup(a, V_LANE, 8192, 1024, 47, VB)
    for k in range(4):
        a("v_add_u32 %s, 65536, %s" % (vr(PWH + k), vr(pw + k)))
    a("v_lshlrev_b32 v1, 4, v0")
    a("s_barrier")
    for u in range(16):
        a("s_add_u32 m0, %s, %d" % (sr(S_W2K), u * 8192))
        a("s_add_u32 %s, %s, %d" % (sr(S_TMP), sr(S_WOFF), u * 32 * 1024))
        a("buffer_load_dwordx4 %s, %s, %s offen lds" % (vr(vw0), sr(S_W, 4), sr(S_TMP)))
        a("buffer_load_dwordx4 %s, %s, %s offen offset:1024 lds" % (vr(vw1), sr(S_W, 4), sr(S_TMP)))
    WF, V_ACC = 32, 96
    for r in range(4):
        a("v_mov_b32 %s, 0" % vr(WF + r))
    a("s_nop 1")
    for k in range(4):
        a("v_mfma_f32_32x32x16_bf16 %s, %s, %s, 0" % (vr(V_ACC + 16 * k, 16), vr(WF, 4), vr(WF, 4)))
    a("v_lshlrev_b32 v246, 3, %s" % vr(V_LANE))
    a("v_min_u32 v246, 56, v246")
    a("s_mov_b32 s85, 0")
    a("s_mov_b32 s83, 0xff")
    a("s_mov_b32 s84, 1")
    a.label("L_ground")
    a("buffer_load_dwordx2 v[248:249], v246, %s, s61 offen sc1" % sr(S_O, 4))
    a("s_add_u32 s85, s85, 1")
    a("s_waitcnt vmcnt(0)")
    a("v_cmp_eq_u64 vcc, v[248:249], %s" % vr(V_NONCE, 2))
    a("s_cmp_ge_u32 s85, %d" % OPT["spin"])
    a("s_cselect_b32 s82, 0xff, vcc_lo")
    a("s_and_b32 s82, s82, s83")
    a("s_or_b32 s81, s82, s84")
    a("s_cbranch_scc1 L_gwork")
    a("s_sleep 4")
    a("s_branch L_ground")
    a.label("L_gwork")
    for c in range(8):
        a("s_bitcmp1_b32 s82, %d" % c)
        a("s_cbranch_scc0 L_gl%d" % c)
        a("s_add_u32 %s, %s, %d" % (sr(S_TMP), sr(S_XOFF), c * 8192))
        a("s_add_u32 %s, %s, %d" % (sr(S_TMP2), sr(S_XOFF), c * 8192 + 4096))
        for k in range(8):
            a("buffer_load_dwordx4 %s, v1, %s, %s offen offset:%d sc1" % (ar(c * 32 + 4 * k, 4), sr(S_O, 4), sr(S_TMP if k < 4 else S_TMP2), (k % 4) * 1024))
        a.label("L_gl%d" % c)
    a("s_cmp_eq_u32 s84, 0")
    a("s_cbranch_scc1 L_gnob")
    a("s_mov_b32 s84, 0")
    a("s_barrier")
    stamp(a, 3)
    a.label("L_gnob")
    a("s_waitcnt vmcnt(0)")
    for c in range(8):
        a("s_bitcmp1_b32 s82, %d" % c)
        a("s_cbranch_scc0 L_gm%d" % c)
        rd = [[], []]
        for hf in range(2):
            o = (2 * c + hf) * 8192
            pb = pw if o < 65536 else PWH
            o &= 65535
            for dbl in range(2):
                for hr in range(2):
                    for k2 in range(2):
                        s_ = hf * 2 + k2
                        rd[hf].append("ds_read_b64_tr_b16 %s, %s offset:%d" % (vr(WF + (dbl * 4 + s_) * 4 + 2 * hr, 2), vr(pb + dbl * 2 + hr),
                                                                              o + k2 * 4096 + hr * 1024))
        mm = [[], []]
        for hf in range(2):
            for k2 in range(2):
                s_ = hf * 2 + k2
                for dbl in range(2):
                    for qbl in range(2):
                        acc = vr(V_ACC + (dbl * 2 + qbl) * 16, 16)
                        mm[hf].append("v_mfma_f32_32x32x16_bf16 %s, %s, %s, %s" % (acc, vr(WF + (dbl * 4 + s_) * 4, 4),
                                                                                  ar(c * 32 + (qbl * 4 + s_) * 4, 4), acc))
        for x in rd[0]:
            a(x)
        a("s_waitcnt lgkmcnt(0)")
        interleave(a, mm[0], rd[1])
        a("s_waitcnt lgkmcnt(0)")
        for x in mm[1]:
            a(x)
        a.label("L_gm%d" % c)
    a("s_andn2_b32 s83, s83, s82")
    a("s_cbranch_scc1 L_ground")
    a("s_lshl_b32 s59, s60, 3")
    a("s_add_u32 s59, s59, s3")
    a("s_lshl_b32 s59, s59, 16")
    a("s_lshl_b32 s62, %s, 14" % sr(S_WAVE))
    a("s_add_u32 s59, s59, s62")
    a("s_add_u32 s59, s59, %d" % (8 << 20))
    a("v_lshlrev_b32 v1, 4, v0")
    a("s_nop 7")
    a("s_nop 3")
    for k in range(16):
        if k and k % 4 == 0:
            a("s_add_u32 s59, s59, 4096")
        a("buffer_store_dwordx4 %s, v1, %s, s59 offen offset:%d sc1" % (vr(V_ACC + 4 * k, 4), sr(S_O, 4), (k % 4) * 1024))
    a("s_lshl_b32 s62, s60, 2")
    a("s_add_u32 s61, s62, %s" % sr(S_WAVE))
    a("s_lshl_b32 s61, s61, 3")
    a("s_add_u32 s61, s61, s3")
    a("s_lshl_b32 s61, s61, 3")
    a("s_add_u32 s61, s61, %d" % FLAG_P)
    signal(a, 61)
    stamp(a, 4)
    a("s_lshr_b32 s61, s3, 1")
    a("s_add_u32 s61, s61, s62")
    a("s_lshl_b32 s61, s61, 6")
    a("s_add_u32 s61, s61, %d" % FLAG_P)
    a("s_lshl_b32 s17, s3, 2")
    a("s_add_u32 s17, s17, %s" % sr(S_WAVE))
    a("s_lshl_b32 s18, s60, 19")
    a("s_lshl_b32 s19, s17, 11")
    a("s_add_u32 s18, s18, s19")
    a("s_add_u32 s18, s18, %d" % (8 << 20))
    a("s_lshl_b32 s12, s77, 7")
    a("s_lshr_b32 s13, s17, 4")
    a("s_lshl_b32 s13, s13, 6")
    a("s_add_u32 s12, s12, s13")
    a("s_bfe_u32 s13, s17, 0x10001")
    a("s_lshl_b32 s13, s13, 5")
    a("s_add_u32 s12, s12, s13")
    a("s_lshl_b32 s12, s12, 11")
    a("s_lshl_b32 s13, s76, 10")
    a("s_add_u32 s12, s12, s13")
    a("s_lshl_b32 s13, s78, 8")
    a("s_add_u32 s12, s12, s13")
    a("s_bfe_u32 s13, s17, 0x10003")
    a("s_lshl_b32 s13, s13, 7")
    a("s_add_u32 s12, s12, s13")
    a("s_bfe_u32 s13, s17, 0x10002")
    a("s_lshl_b32 s13, s13, 6")
    a("s_add_u32 s12, s12, s13")
    a("s_and_b32 s13, s17, 1")
    a("s_lshl_b32 s13, s13, 5")
    a("s_add_u32 s12, s12, s13")
    a("v_and_b32 v2, 31, v0")
    a("v_lshlrev_b32 v2, 11, v2")
    a("v_lshrrev_b32 v3, 5, v0")
    a("v_lshl_add_u32 v2, v3, 4, v2")
    poll(a, "p", 61, 8)
    for k in range(8):
        a("buffer_load_dwordx4 %s, v1, %s, s18 offen sc1" % (vr(8 + 8 * k, 4), sr(S_O, 4)))
        a("buffer_load_dwordx4 %s, v1, %s, s18 offen offset:1024 sc1" % (vr(12 + 8 * k, 4), sr(S_O, 4)))
        a("s_add_u32 s18, s18, 65536")
    for k in range(1, 8):
        a("s_waitcnt vmcnt(%d)" % (14 - 2 * k))
        for e in range(8):
            a("v_add_f32 %s, %s, %s" % (vr(8 + e), vr(8 + e), vr(8 + 8 * k + e)))
    for e in range(4):
        a("v_cvt_pk_bf16_f32 %s, %s, %s" % (vr(4 + e), vr(8 + 2 * e), vr(9 + 2 * e)))
    a("buffer_store_dwordx4 v[4:7], v2, %s, s12 offen" % sr(S_OUT, 4))
    stamp(a, 7)
    a("s_endpgm")


def kernel1(a):
    a.label(K1NAME)
    a("s_cmp_ge_u32 s2, 256")
    a("s_cbranch_scc1 L_end1")
    a("s_load_dwordx16 %s, s[0:1], 0" % sr(S_P, 16))
    a("s_load_dwordx2 %s, s[0:1], 64" % sr(S_P + 16, 2))
    a("s_load_dwordx2 %s, s[0:1], 96" % sr(S_P + 18, 2))
    if OPT["fuse"]:
        a("s_load_dwordx2 s[86:87], s[0:1], 72")
        a("s_load_dwordx2 %s, s[0:1], 80" % sr(S_OUT, 2))
        a("s_load_dwordx2 %s, s[0:1], 88" % sr(S_D, 2))
        a("s_memrealtime s[90:91]")
    a("v_lshrrev_b32 v1, 6, v0")
    a("v_and_b32 %s, 63, v0" % vr(V_LANE))
    a("v_readfirstlane_b32 %s, v1" % sr(S_WAVE))
    a("s_and_b32 s3, s2, 7")
    a("s_lshr_b32 s45, s2, 3")
    a("s_cmp_ge_u32 s45, 16")
    a("s_cselect_b32 %s, 1, 0" % sr(S_TYPE))
    a("s_mov_b32 %s, %s" % (sr(S_C), f32hex(CEXP)))
    a("s_mov_b32 %s, %s" % (sr(S_T8), f32hex(TLAZY)))
    a("s_lshr_b32 s46, %s, 1" % sr(S_WAVE))
    a("s_and_b32 s47, %s, 1" % sr(S_WAVE))
    a("s_lshl_b32 %s, %s, 15" % (sr(S_RING), sr(S_WAVE)))
    a("s_lshl_b32 %s, %s, 11" % (sr(S_W2K), sr(S_WAVE)))
    a("s_waitcnt lgkmcnt(0)")
    a("s_cmp_eq_u32 %s, 1" % sr(S_TYPE))
    a("s_cbranch_scc1 L_setupA")
    a("s_and_b32 s76, s45, 3")
    a("s_lshl_b32 s77, s3, 2")
    a("s_add_u32 s76, s76, s77")
    a("s_lshr_b32 s77, s45, 2")
    a("s_lshl_b32 s79, s46, 2")
    a("s_add_u32 s79, s79, s77")
    a("s_lshl_b32 s78, s79, 5")
    a("s_add_u32 s78, s78, s76")
    a("s_lshl_b32 s78, s78, 18")
    a("s_add_u32 %s, %s, s78" % (sr(S_K), sr(S_P + 12)))
    a("s_addc_u32 %s, %s, 0" % (sr(S_K + 1), sr(S_P + 13)))
    a("s_add_u32 %s, %s, s78" % (sr(S_V), sr(S_P + 14)))
    a("s_addc_u32 %s, %s, 0" % (sr(S_V + 1), sr(S_P + 15)))
    a("s_mov_b32 %s, %s" % (sr(S_X), sr(S_P + 10)))
    a("s_mov_b32 %s, %s" % (sr(S_X + 1), sr(S_P + 11)))
    a("s_mov_b32 %s, %s" % (sr(S_W), sr(S_P + 16)))
    a("s_mov_b32 %s, %s" % (sr(S_W + 1), sr(S_P + 17)))
    a("s_lshl_b32 %s, s77, 16" % sr(S_XOFF))
    a("s_lshl_b32 s82, s77, 1")
    a("s_and_b32 s83, s45, 3")
    a("s_add_u32 s82, s82, s83")
    a("s_and_b32 s82, s82, %d" % (0 if OPT["norot"] else 7))
    a("s_lshl_b32 %s, s76, 8" % sr(S_WOFF))
    a("s_add_u32 %s, s79, 8" % sr(S_OFLAG))
    a("s_lshl_b32 %s, %s, 5" % (sr(S_OFLAG), sr(S_OFLAG)))
    a("s_add_u32 %s, %s, s76" % (sr(S_OFLAG), sr(S_OFLAG)))
    a("s_branch L_setup_done")
    a.label("L_setupA")
    a("s_sub_u32 s45, s45, 16")
    a("s_lshr_b32 s77, s45, 1")
    a("s_and_b32 s76, s45, 1")
    a("s_lshl_b32 s76, s76, 1")
    a("s_lshl_b32 s78, s3, 2")
    a("s_add_u32 s76, s76, s78")
    a("s_lshl_b32 s78, s77, 3")
    a("s_add_u32 s78, s78, s3")
    a("s_lshl_b32 s78, s78, 18")
    a("s_add_u32 %s, %s, s78" % (sr(S_K), sr(S_P + 2)))
    a("s_addc_u32 %s, %s, 0" % (sr(S_K + 1), sr(S_P + 3)))
    a("s_add_u32 %s, %s, s78" % (sr(S_V), sr(S_P + 4)))
    a("s_addc_u32 %s, %s, 0" % (sr(S_V + 1), sr(S_P + 5)))
    a("s_mov_b32 %s, %s" % (sr(S_X), sr(S_P + 0)))
    a("s_mov_b32 %s, %s" % (sr(S_X + 1), sr(S_P + 1)))
    a("s_mov_b32 %s, %s" % (sr(S_W), sr(S_P + 6)))
    a("s_mov_b32 %s, %s" % (sr(S_W + 1), sr(S_P + 7)))
    a("s_lshl_b32 %s, s77, 16" % sr(S_XOFF))
    a("s_lshl_b32 %s, s76, 8" % sr(S_WOFF))
    a("s_and_b32 s82, s45, 1")
    a("s_lshl_b32 s82, s82, 2")
    a("s_add_u32 s82, s82, s77")
    a("s_and_b32 s82, s82, %d" % (0 if OPT["norot"] else 7))
    a("s_lshl_b32 %s, s77, 5" % sr(S_OFLAG))
    a("s_add_u32 %s, %s, s76" % (sr(S_OFLAG), sr(S_OFLAG)))
    a("s_add_u32 %s, %s, s46" % (sr(S_OFLAG), sr(S_OFLAG)))
    a.label("L_setup_done")
    a("s_lshl_b32 %s, %s, 1" % (sr(S_OFLAG), sr(S_OFLAG)))
    a("s_add_u32 %s, %s, s47" % (sr(S_OFLAG), sr(S_OFLAG)))
    a("s_lshl_b32 %s, %s, 13" % (sr(S_OOFF), sr(S_OFLAG)))
    a("s_lshl_b32 %s, %s, 3" % (sr(S_OFLAG), sr(S_OFLAG)))
    a("s_add_u32 %s, %s, %d" % (sr(S_OFLAG), sr(S_OFLAG), FLAG_O))
    if OPT["fuse"]:
        a("s_mov_b32 s64, s86")
        a("s_mov_b32 s65, s87")
        a("s_mov_b32 %s, 256" % sr(S_D + 2))
        a("s_mov_b32 %s, 0x00020000" % sr(S_D + 3))
        a("s_mov_b32 %s, 1048576" % sr(S_OUT + 2))
        a("s_mov_b32 %s, 0x00020000" % sr(S_OUT + 3))
        a("s_cmp_lg_u32 %s, 0" % sr(S_WAVE))
        a("s_cbranch_scc1 L_nononce")
        a("s_or_b32 s90, s90, 1")
        a("v_mov_b32 v244, s90")
        a("v_mov_b32 v245, s91")
        a("v_mov_b32 v246, 0")
        a("v_mov_b32 v247, 0")
        a("v_mov_b32 v248, 0")
        a("s_mov_b64 exec, 1")
        a("buffer_atomic_cmpswap_x2 v[244:247], v248, %s, 0 offen sc0 sc1" % sr(S_D, 4))
        a("s_mov_b64 exec, -1")
        a.label("L_nononce")
    a("s_mov_b32 %s, 262144" % sr(S_K + 2))
    a("s_mov_b32 %s, 262144" % sr(S_V + 2))
    a("s_mov_b32 %s, 0x00020000" % sr(S_K + 3))
    a("s_mov_b32 %s, 0x00020000" % sr(S_V + 3))
    a("s_mov_b32 %s, 524288" % sr(S_X + 2))
    a("s_mov_b32 %s, 0x00020000" % sr(S_X + 3))
    a("s_mov_b32 %s, 4194304" % sr(S_W + 2))
    a("s_mov_b32 %s, 0x00020000" % sr(S_W + 3))
    a("s_mov_b32 %s, %s" % (sr(S_O), sr(S_P + 18)))
    a("s_mov_b32 %s, %s" % (sr(S_O + 1), sr(S_P + 19)))
    a("s_mov_b32 %s, %d" % (sr(S_O + 2), 25 << 20))
    a("s_mov_b32 %s, 0x00020000" % sr(S_O + 3))
    a("s_lshl_b32 %s, s47, 13" % sr(S_PF))
    stamp_srd(a, sr(S_P + 18), sr(S_P + 19))
    stamp(a, 0)
    fstamp(a)
    L = V_LANE
    a("v_lshlrev_b32 %s, 4, %s" % (vr(V_L16), vr(L)))
    a("v_lshrrev_b32 v40, 4, %s" % vr(L))
    a("v_and_b32 v41, 15, %s" % vr(L))
    a("v_lshlrev_b32 v42, 2, v40")
    a("v_xor_b32 v42, v42, v41")
    a("v_lshlrev_b32 v42, 4, v42")
    a("v_lshl_add_u32 %s, v40, 8, v42" % vr(V_DMA))
    for n in range(1, 4):
        a("v_xor_b32 %s, %d, %s" % (vr(V_DMA + n), 16 * n, vr(V_DMA)))
    a("v_and_b32 v43, 3, v41")
    a("v_lshlrev_b32 v43, 2, v43")
    a("v_lshrrev_b32 v44, 2, v41")
    a("v_or_b32 v43, v43, v44")
    a("v_lshrrev_b32 v44, 5, %s" % vr(L))
    a("v_xor_b32 v45, v44, v43")
    a("v_lshlrev_b32 v45, 4, v45")
    a("v_and_b32 v46, 31, %s" % vr(L))
    a("v_lshl_add_u32 %s, v46, 8, v45" % vr(V_QA0))
    a("v_add_u32 %s, %s, %s" % (vr(V_KAD), sr(S_RING), vr(V_QA0)))
    for k in range(1, 8):
        a("v_xor_b32 %s, %d, %s" % (vr(V_KAD + k), 32 * k, vr(V_KAD)))
    a("v_lshlrev_b32 %s, 13, v46" % vr(V_OVOFF))
    a("v_lshl_add_u32 %s, v44, 4, %s" % (vr(V_OVOFF), vr(V_OVOFF)))
    a("s_lshl_b32 %s, s47, 7" % sr(S_TMP))
    a("v_add_u32 %s, %s, %s" % (vr(V_OVOFF), sr(S_TMP), vr(V_OVOFF)))
    a("v_lshrrev_b32 v45, 2, v41")
    a("v_and_b32 v46, 1, v40")
    a("v_and_b32 v47, 1, v41")
    a("v_lshl_add_u32 v47, v46, 1, v47")
    a("v_xor_b32 v47, v47, v44")
    a("v_lshl_add_u32 v47, v45, 2, v47")
    a("v_lshlrev_b32 v47, 4, v47")
    a("v_bfe_u32 v46, v41, 1, 1")
    a("v_lshl_add_u32 v47, v46, 3, v47")
    a("v_lshl_add_u32 v45, v44, 2, v45")
    a("v_lshl_add_u32 v47, v45, 8, v47")
    a("v_add_u32 %s, %s, v47" % (vr(V_VAD), sr(S_RING)))
    for k in range(1, 8):
        a("v_xor_b32 %s, %d, %s" % (vr(V_VAD + k), 32 * k, vr(V_VAD)))
    VB = 32
    gemm_lds_setup(a, L, 1024, 8192, 47, VB)
    a("s_cmp_eq_u32 %s, 1" % sr(S_TYPE))
    a("s_cbranch_scc1 L_typeA")

    def kv_unit(u, nt):
        srd = S_K if u % 2 == 0 else S_V
        o = []
        for g in range(2):
            o.append("s_add_u32 m0, %s, %d" % (sr(S_RING), u * 8192 + g * 4096))
            o.append("s_add_u32 %s, %s, %d" % (sr(S_TMP), sr(S_PF), (u // 2) * 16384 + g * 4096))
            for n in range(4):
                o.append("buffer_load_dwordx4 %s, %s, %s offen offset:%d%s lds" % (
                    vr(V_DMA + n), sr(srd, 4), sr(S_TMP), n * 1024, " nt" if nt else ""))
        return o

    def qproj(NX, NCG, off, nt):
        done = set()

        def extra(c, busy):
            o = []
            if c < 4:
                o += kv_unit(c // 2, nt)[6 * (c % 2):6 * (c % 2) + 6]
            else:
                for u, slots in ((2, range(0, 4)), (3, range(4, 8))):
                    if u not in done and not any(x in busy for x in slots) and (u == 2 or 2 in done):
                        done.add(u)
                        o += kv_unit(u, nt)
            return o
        V_FR, V_ACC = 64, 128
        gemm_lds(a, NX, NCG, 262144, 8192, None, 12, off, VB, V_FR, V_ACC, S_X, S_W, S_XOFF, S_WOFF, 46, 46,
                 idle=lambda: init_pass(a), extra=extra)
        a("s_barrier")
        late = extra(8, [])
        for x in late:
            emit(a, x)
        a("s_add_u32 %s, %s, 32768" % (sr(S_PF), sr(S_PF)))
        fstamp(a)
        stamp(a, 1)
        a("s_lshl_b32 %s, s47, 7" % sr(S_TMP))
        a("v_xor_b32 v29, %s, %s" % (sr(S_TMP), vr(V_QA0)))
        a("s_lshl_b32 %s, s46, 14" % sr(S_TMP))
        a("s_add_u32 %s, %s, %d" % (sr(S_TMP), sr(S_TMP), SCR))
        a("v_add_u32 v29, %s, v29" % sr(S_TMP))
        a("s_nop 7")
        k = 0
        for dbl in range(2):
            for half in range(2):
                x = dbl * 64 + half * 32
                if x:
                    a("v_xor_b32 v30, %d, v29" % x)
                for qbl in range(2):
                    src = V_ACC + (dbl * 2 + qbl) * 16 + half * 8
                    dst = 64 + k * 4
                    k += 1
                    for e in range(8):
                        a("v_mul_f32 %s, %s, %s" % (vr(src + e), sr(S_C), vr(src + e)))
                    for e in range(4):
                        a("v_cvt_pk_bf16_f32 %s, %s, %s" % (vr(dst + e), vr(src + 2 * e), vr(src + 2 * e + 1)))
                    a("ds_write_b128 %s, %s offset:%d" % ("v30" if x else "v29", vr(dst, 4), qbl * 8192))
        a("s_waitcnt lgkmcnt(0)")
        a("s_barrier")
        a("v_add_u32 v29, %s, %s" % (sr(S_TMP), vr(V_QA0)))
        for s in range(8):
            if s:
                a("v_xor_b32 v30, %d, v29" % (32 * s))
            for qb in range(2):
                a("ds_read_b128 %s, %s offset:%d" % (vr(V_Q + (qb * 8 + s) * 4, 4), "v30" if s else "v29", qb * 8192))
            if s == 5:
                a("s_waitcnt lgkmcnt(4)")
        a("s_waitcnt lgkmcnt(0)")
        fstamp(a)
        fdump(a)
        stamp(a, 2)
        if OPT["fuse"]:
            a("v_mov_b32 v246, 0")
            a("buffer_load_dwordx2 %s, v246, %s, 0 offen sc1" % (vr(V_NONCE, 2), sr(S_D, 4)))
        a("s_waitcnt vmcnt(24)")
        for x in k_reads(0):
            a(x)

    qproj(2, 1, 4, OPT["nt"] & 1)
    tile_loop(a, "b", OPT["nt"] & 1)
    stamp(a, 5)
    if OPT["fuse"]:
        combine2(a, "b", " sc1")
        a("s_branch L_tail")
    else:
        combine2(a, "b")
        stamp(a, 6)
        a("s_endpgm")
    for par in range(2):
        slow_path(a, 0, V_S, "b%d0" % par)
        slow_path(a, 1, V_S + 16, "b%d1" % par)
    a.label("L_typeA")
    qproj(1, 2, 8, OPT["nt"] & 2)
    tile_loop(a, "a", OPT["nt"] & 2)
    stamp(a, 5)
    if OPT["fuse"]:
        combine2(a, "a", " sc1")
        oproj_tail(a)
    else:
        combine2(a, "a")
        stamp(a, 6)
    a.label("L_end1")
    a("s_endpgm")
    for par in range(2):
        slow_path(a, 0, V_S, "a%d0" % par)
        slow_path(a, 1, V_S + 16, "a%d1" % par)


def kernel2(a):
    a.label("oproj_kernel")
    a("s_cmp_ge_u32 s2, 256")
    a("s_cbranch_scc1 L_end2")
    a("s_load_dwordx2 s[48:49], s[0:1], 32")
    a("s_load_dwordx2 s[50:51], s[0:1], 72")
    a("s_load_dwordx2 s[54:55], s[0:1], 96")
    a("v_lshrrev_b32 v1, 6, v0")
    a("v_and_b32 v0, 63, v0")
    a("v_readfirstlane_b32 %s, v1" % sr(S_WAVE))
    a("s_and_b32 s3, s2, 7")
    a("s_lshr_b32 s45, s2, 3")
    a("s_lshr_b32 s56, s45, 4")
    a("s_bfe_u32 s57, s45, 0x20002")
    a("s_and_b32 s58, s45, 3")
    a("s_lshr_b32 s46, %s, 1" % sr(S_WAVE))
    a("s_and_b32 s47, %s, 1" % sr(S_WAVE))
    a("s_lshl_b32 %s, %s, 11" % (sr(S_W2K), sr(S_WAVE)))
    a("s_waitcnt lgkmcnt(0)")
    a("s_cmp_eq_u32 s56, 0")
    a("s_cselect_b32 %s, s48, s50" % sr(S_W))
    a("s_cselect_b32 %s, s49, s51" % sr(S_W + 1))
    a("s_mov_b32 %s, 4194304" % sr(S_W + 2))
    a("s_mov_b32 %s, 0x00020000" % sr(S_W + 3))
    a("s_mov_b32 %s, s54" % sr(S_X))
    a("s_mov_b32 %s, s55" % sr(S_X + 1))
    a("s_mov_b32 %s, %d" % (sr(S_X + 2), 24 << 20))
    a("s_mov_b32 %s, 0x00020000" % sr(S_X + 3))
    stamp_srd(a, "s54", "s55")
    stamp(a, 0, base=65536)
    a("s_lshl_b32 %s, s56, 22" % sr(S_XOFF))
    a("s_lshl_b32 s59, s57, 20")
    a("s_add_u32 %s, %s, s59" % (sr(S_XOFF), sr(S_XOFF)))
    a("s_lshl_b32 s59, s3, 10")
    a("s_add_u32 %s, %s, s59" % (sr(S_XOFF), sr(S_XOFF)))
    a("s_lshl_b32 %s, s3, 19" % sr(S_WOFF))
    a("s_lshl_b32 s59, s58, 8")
    a("s_add_u32 %s, %s, s59" % (sr(S_WOFF), sr(S_WOFF)))
    a("s_lshl_b32 s82, s57, 1")
    a("s_add_u32 s82, s82, s58")
    a("s_and_b32 s82, s82, %d" % (7 if OPT["rot"] else 0))
    VB = 8
    gemm_lds_setup(a, 0, 8192, 1024, 47, VB)
    V_FR, V_ACC = 32, 96
    gemm_lds(a, 2, 1, 524288, 1024, 0, 20, 0, VB, V_FR, V_ACC, S_X, S_W, S_XOFF, S_WOFF, 46, 46)
    stamp(a, 1, base=65536)
    a("s_lshl_b32 s59, s45, 3")
    a("s_add_u32 s59, s59, s3")
    a("s_lshl_b32 s59, s59, 16")
    a("s_lshl_b32 s60, %s, 14" % sr(S_WAVE))
    a("s_add_u32 s59, s59, s60")
    a("s_add_u32 s59, s59, %d" % (8 << 20))
    a("v_lshlrev_b32 v1, 4, v0")
    a("s_nop 7")
    a("s_nop 3")
    for k in range(16):
        if k and k % 4 == 0:
            a("s_add_u32 s59, s59, 4096")
        a("buffer_store_dwordx4 %s, v1, %s, s59 offen offset:%d" % (vr(V_ACC + 4 * k, 4), sr(S_X, 4), (k % 4) * 1024))
    stamp(a, 2, base=65536)
    a.label("L_end2")
    a("s_endpgm")


def kernel3(a):
    a.label("oreduce_kernel")
    a("s_cmp_ge_u32 s2, 256")
    a("s_cbranch_scc1 L_end3")
    a("s_load_dwordx2 s[4:5], s[0:1], 80")
    a("s_load_dwordx2 s[8:9], s[0:1], 96")
    a("v_lshrrev_b32 v1, 6, v0")
    a("v_and_b32 v0, 63, v0")
    a("v_readfirstlane_b32 s24, v1")
    a("s_lshr_b32 s16, s2, 3")
    a("s_and_b32 s17, s2, 7")
    a("s_lshl_b32 s17, s17, 2")
    a("s_add_u32 s17, s17, s24")
    a("s_lshl_b32 s18, s16, 19")
    a("s_lshl_b32 s19, s17, 11")
    a("s_add_u32 s18, s18, s19")
    a("s_add_u32 s18, s18, %d" % (8 << 20))
    a("v_lshlrev_b32 v1, 4, v0")
    a("s_waitcnt lgkmcnt(0)")
    a("s_mov_b32 s6, 1048576")
    a("s_mov_b32 s7, 0x00020000")
    a("s_mov_b32 s10, %d" % (24 << 20))
    a("s_mov_b32 s11, 0x00020000")
    for k in range(8):
        a("buffer_load_dwordx4 %s, v1, s[8:11], s18 offen" % vr(8 + 8 * k, 4))
        a("buffer_load_dwordx4 %s, v1, s[8:11], s18 offen offset:1024" % vr(12 + 8 * k, 4))
        a("s_add_u32 s18, s18, 65536")
    a("s_bfe_u32 s20, s16, 0x20002")
    a("s_lshl_b32 s20, s20, 7")
    a("s_lshr_b32 s21, s17, 4")
    a("s_lshl_b32 s21, s21, 6")
    a("s_add_u32 s20, s20, s21")
    a("s_bfe_u32 s21, s17, 0x10001")
    a("s_lshl_b32 s21, s21, 5")
    a("s_add_u32 s20, s20, s21")
    a("s_lshl_b32 s20, s20, 11")
    a("s_lshr_b32 s21, s16, 4")
    a("s_lshl_b32 s21, s21, 10")
    a("s_add_u32 s20, s20, s21")
    a("s_and_b32 s21, s16, 3")
    a("s_lshl_b32 s21, s21, 8")
    a("s_add_u32 s20, s20, s21")
    a("s_bfe_u32 s21, s17, 0x10003")
    a("s_lshl_b32 s21, s21, 7")
    a("s_add_u32 s20, s20, s21")
    a("s_bfe_u32 s21, s17, 0x10002")
    a("s_lshl_b32 s21, s21, 6")
    a("s_add_u32 s20, s20, s21")
    a("s_and_b32 s21, s17, 1")
    a("s_lshl_b32 s21, s21, 5")
    a("s_add_u32 s20, s20, s21")
    a("v_and_b32 v2, 31, v0")
    a("v_lshlrev_b32 v2, 11, v2")
    a("v_lshrrev_b32 v3, 5, v0")
    a("v_lshl_add_u32 v2, v3, 4, v2")
    for k in range(1, 8):
        a("s_waitcnt vmcnt(%d)" % (14 - 2 * k))
        for e in range(8):
            a("v_add_f32 %s, %s, %s" % (vr(8 + e), vr(8 + e), vr(8 + 8 * k + e)))
    for e in range(4):
        a("v_cvt_pk_bf16_f32 %s, %s, %s" % (vr(4 + e), vr(8 + 2 * e), vr(9 + 2 * e)))
    a("buffer_store_dwordx4 v[4:7], v2, s[4:7], s20 offen")
    a.label("L_end3")
    a("s_endpgm")


def descriptor(name, vgpr, accum, sgpr=102):
    return """.amdhsa_kernel %s
  .amdhsa_next_free_vgpr %d
  .amdhsa_next_free_sgpr %d
  .amdhsa_accum_offset %d
  .amdhsa_group_segment_fixed_size 0
  .amdhsa_kernarg_size 104
  .amdhsa_user_sgpr_count 2
  .amdhsa_user_sgpr_kernarg_segment_ptr 1
  .amdhsa_system_sgpr_workgroup_id_x 1
.end_amdhsa_kernel
""" % (name, vgpr, sgpr, accum)


def main():
    out = HEADER
    if OPT["fuse"]:
        out += "; @launch grid=(256,1,1) block=(256,1,1) lds=%d\n" % LDS1
        ks = ((K1NAME, kernel1),)
    else:
        out += "; @launch kernel=attn_kernel grid=(256,1,1) block=(256,1,1) lds=%d\n" % LDS1
        if OPT["k2"]:
            out += "; @launch kernel=oproj_kernel grid=(256,1,1) block=(256,1,1) lds=163840\n"
            out += "; @launch kernel=oreduce_kernel grid=(256,1,1) block=(256,1,1) lds=0\n"
        ks = (("attn_kernel", kernel1), ("oproj_kernel", kernel2), ("oreduce_kernel", kernel3))
    out += '.amdgcn_target "amdgcn-amd-amdhsa--gfx950"\n.text\n'
    for nm, fn in ks:
        a = Asm()
        out += ".globl %s\n.p2align 8\n.type %s,@function\n" % (nm, nm)
        fn(a)
        out += a.text()
    out += '.section .rodata,"a"\n.p2align 6\n'
    out += descriptor(K1NAME, 512, 256)
    if not OPT["fuse"]:
        out += ".p2align 6\n"
        out += descriptor("oproj_kernel", 160, 160)
        out += ".p2align 6\n"
        out += descriptor("oreduce_kernel", 72, 72, 32)
    open(sys.argv[1], "w").write(out)


K1NAME = (NAME + "_kernel") if OPT["fuse"] else "attn_kernel"
main()
```

```python
import math, sys

NAME = "concat_heads__gqa_block_cached__mha_block_cached__near_ridge"

HEADER = """; Kernarg layout for this problem (104 bytes, ptrs only, base s[0:1]):
"""

OPT = dict(nt=0, nocompute=0, k2=1, stamp=0, qdma=1, rot=1, xort=2, rv=3, qreg=1, kvlate=0, norot=0, fine=0, fuse=1, spin=20000)
for arg in sys.argv[2:]:
    k, v = arg.split("=")
    OPT[k] = int(v)


def f32hex(x):
    import struct
    return "0x%08x" % struct.unpack("<I", struct.pack("<f", x))[0]


class Asm:
    def __init__(self):
        self.lines = []
        self.vm = 0
        self.uid = 0

    def __call__(self, s):
        self.lines.append("    " + s)

    def label(self, l):
        self.lines.append(l + ":")

    def c(self, s):
        self.lines.append("    ; " + s)

    def vmem(self, s):
        self(s)
        self.vm += 1
        return self.vm - 1

    def wait_vm(self, idx):
        n = self.vm - idx - 1
        assert 0 <= n
        n = min(n, 63)
        self("s_waitcnt vmcnt(%d)" % n)

    def text(self):
        return "\n".join(self.lines) + "\n"


def vr(b, n=1):
    return "v%d" % b if n == 1 else "v[%d:%d]" % (b, b + n - 1)


def ar(b, n=1):
    return "a%d" % b if n == 1 else "a[%d:%d]" % (b, b + n - 1)


def sr(b, n=1):
    return "s%d" % b if n == 1 else "s[%d:%d]" % (b, b + n - 1)


def interleave(a, mfmas, fillers, lead=0):
    n = len(mfmas)
    gaps = n - lead
    done = 0
    for i, m in enumerate(mfmas):
        a(m)
        if i >= lead and gaps > 0:
            want = (len(fillers) * (i - lead + 1) + gaps - 1) // gaps
            while done < want:
                emit(a, fillers[done])
                done += 1
    while done < len(fillers):
        emit(a, fillers[done])
        done += 1


def emit(a, f):
    if callable(f):
        f()
    elif f.startswith("buffer_"):
        a.vmem(f)
    elif "\n" in f:
        for x in f.split("\n"):
            emit(a, x)
    elif f.endswith(":"):
        a.label(f[:-1])
    else:
        a(f)


SCALE = 128 ** -0.5
CEXP = SCALE * math.log2(math.e)
TLAZY = 8.0
RING = 32768
SCR = 131072
STG = 65536
LDS1 = 163840
ITEM_JUMP = 4 * 32 * 262144 - 262144
SEL_LO = 0x05040100
SEL_HI = 0x07060302

S_K, S_V, S_X, S_W, S_O = 4, 8, 12, 16, 20
S_WAVE, S_TYPE, S_PF, S_T, S_RING = 24, 25, 26, 27, 28
S_XOFF, S_WOFF, S_C, S_SELLO, S_SELHI = 29, 30, 31, 32, 33
S_OOFF0, S_OOFF1, S_PASS, S_TMP, S_TMP2, S_M0K, S_M0V, S_FIRST = 34, 35, 36, 37, 38, 39, 40, 41
S_T8, S_JUMP, S_OOFF = 42, 43, 44
S_W2K, S_TMP3 = 80, 81
S_PFV, S_TK, S_TV, S_XORT = 85, 86, 87, 88
S_P = 48

V_LANE, V_KA, V_VA, V_TA, V_TB = 0, 1, 2, 3, 4
V_DMA = 5
V_MC = 9
V_L = 13
V_TMAX = 17
V_T0 = 18
V_OVOFF = 26
V_L16 = 27
V_QA0 = 28
V_VW = 31
V_VF = 32
V_KF = 64
V_S = 96
V_Q = 128
V_CM = 192
V_KAD = 224
V_VAD = 232
V_ONES = 240
A_L = 128
S_THR = 41
S_RING2 = 39
S_D = 68
S_OUT = 72
S_OFLAG = 89
V_NONCE = 244
FLAG_O = 24 << 20
FLAG_P = (24 << 20) + 8192


def gemm_lds_setup(a, L, XS, WS, s_dh, vb):
    vx0, vx1, vw0, vw1, px, pw, t0, t1 = vb, vb + 1, vb + 2, vb + 3, vb + 4, vb + 8, vb + 12, vb + 13
    a("v_lshrrev_b32 %s, 4, %s" % (vr(t0), vr(L)))
    a("v_and_b32 %s, 7, %s" % (vr(t1), vr(L)))
    a("v_xor_b32 %s, %s, %s" % (vr(t1), vr(t1), vr(t0)))
    a("v_lshlrev_b32 %s, 4, %s" % (vr(t1), vr(t1)))
    a("v_lshrrev_b32 %s, 3, %s" % (vr(t0), vr(L)))
    a("s_lshl_b32 %s, %s, 4" % (sr(S_TMP), sr(S_WAVE)))
    a("v_add_u32 %s, %s, %s" % (vr(t0), sr(S_TMP), vr(t0)))
    a("s_mov_b32 %s, %d" % (sr(S_TMP), XS))
    a("v_mul_lo_u32 %s, %s, %s" % (vr(t0), vr(t0), sr(S_TMP)))
    a("v_add_u32 %s, %s, %s" % (vr(vx0), vr(t0), vr(t1)))
    a("v_xor_b32 %s, 64, %s" % (vr(t1), vr(t1)))
    a("v_add_u32 %s, %s, %s" % (vr(vx1), vr(t0), vr(t1)))
    a("v_add_u32 %s, %d, %s" % (vr(vx1), 8 * XS - 1024, vr(vx1)))
    a("v_lshrrev_b32 %s, 4, %s" % (vr(t0), vr(L)))
    a("v_and_b32 %s, 15, %s" % (vr(t1), vr(L)))
    a("v_lshlrev_b32 %s, 2, %s" % (vr(vw0), vr(t0)))
    a("v_xor_b32 %s, %s, %s" % (vr(t1), vr(t1), vr(vw0)))
    a("s_lshl_b32 %s, %s, 1" % (sr(S_TMP), sr(S_WAVE)))
    a("s_and_b32 %s, %s, 3" % (sr(S_TMP), sr(S_TMP)))
    a("v_xor_b32 %s, %s, %s" % (vr(t1), sr(S_TMP), vr(t1)))
    a("v_lshlrev_b32 %s, 4, %s" % (vr(t1), vr(t1)))
    a("s_lshl_b32 %s, %s, 3" % (sr(S_TMP), sr(S_WAVE)))
    a("v_add_u32 %s, %s, %s" % (vr(t0), sr(S_TMP), vr(t0)))
    a("s_mov_b32 %s, %d" % (sr(S_TMP), WS))
    a("v_mul_lo_u32 %s, %s, %s" % (vr(t0), vr(t0), sr(S_TMP)))
    a("v_add_u32 %s, %s, %s" % (vr(vw0), vr(t0), vr(t1)))
    a("v_xor_b32 %s, 16, %s" % (vr(t1), vr(t1)))
    a("v_add_u32 %s, %s, %s" % (vr(vw1), vr(t0), vr(t1)))
    a("v_add_u32 %s, %d, %s" % (vr(vw1), 4 * WS - 1024, vr(vw1)))
    a("v_bfe_u32 %s, %s, 1, 3" % (vr(t0), vr(L)))
    a("v_lshrrev_b32 %s, 5, %s" % (vr(t1), vr(L)))
    a("v_xor_b32 %s, %s, %s" % (vr(t0), vr(t0), vr(t1)))
    a("v_lshlrev_b32 %s, 4, %s" % (vr(t0), vr(t0)))
    a("v_and_b32 %s, 31, %s" % (vr(t1), vr(L)))
    a("v_lshl_add_u32 %s, %s, 7, %s" % (vr(px), vr(t1), vr(t0)))
    for k in range(1, 4):
        a("v_xor_b32 %s, %d, %s" % (vr(px + k), 32 * k, vr(px)))
    a("v_bfe_u32 %s, %s, 4, 1" % (vr(t0), vr(L)))
    a("v_and_b32 %s, 1, %s" % (vr(t1), vr(L)))
    a("v_lshl_add_u32 %s, %s, 1, %s" % (vr(t0), vr(t0), vr(t1)))
    a("v_lshrrev_b32 %s, 5, %s" % (vr(t1), vr(L)))
    a("v_lshlrev_b32 %s, 1, %s" % (vr(pw + 1), vr(t1)))
    a("v_xor_b32 %s, %s, %s" % (vr(t0), vr(t0), vr(pw + 1)))
    a("v_bfe_u32 %s, %s, 2, 2" % (vr(pw + 1), vr(L)))
    a("v_lshl_add_u32 %s, %s, 2, %s" % (vr(t0), vr(pw + 1), vr(t0)))
    a("v_lshlrev_b32 %s, 4, %s" % (vr(t0), vr(t0)))
    a("v_lshl_add_u32 %s, %s, 3, %s" % (vr(t1), vr(t1), vr(pw + 1)))
    a("v_lshl_add_u32 %s, %s, 8, %s" % (vr(t0), vr(t1), vr(t0)))
    a("v_bfe_u32 %s, %s, 1, 1" % (vr(t1), vr(L)))
    a("v_lshl_add_u32 %s, %s, 3, %s" % (vr(t0), vr(t1), vr(t0)))
    a("s_lshl_b32 %s, %s, 7" % (sr(S_TMP), sr(s_dh)))
    a("v_xor_b32 %s, %s, %s" % (vr(pw), sr(S_TMP), vr(t0)))
    a("v_xor_b32 %s, 16, %s" % (vr(pw + 1), vr(pw)))
    a("v_xor_b32 %s, 64, %s" % (vr(pw + 2), vr(pw)))
    a("v_xor_b32 %s, 80, %s" % (vr(pw + 3), vr(pw)))


def gemm_lds(a, NX, NCG, XUS, WS, base, NSLOT, off, vb, v_fr, v_acc, srd_x, srd_w, s_xoff, s_woff, s_xsel, s_wsel,
             idle=None, extra=None, xflags=""):
    vx0, vx1, vw0, vw1, px, pw, t0, t1 = vb, vb + 1, vb + 2, vb + 3, vb + 4, vb + 8, vb + 12, vb + 13
    NU = NX + 2 * NCG
    NCH = 8
    total = NU * NCH
    if base is None:
        tbl = [w * 32768 + 16384 for w in range(4)] + [w * 32768 + 24576 for w in range(4)] + [SCR + i * 8192 for i in range(4)]
    else:
        tbl = [base + i * 8192 for i in range(NSLOT)]
    slot_addr = lambda u: tbl[(u + off) % NSLOT]
    lastop = {}

    def issue(u):
        c, k = divmod(u, NU)
        o = []
        if k == 0:
            o += ["s_lshl_b32 s83, s82, 7", "s_add_u32 s83, s83, %s" % sr(s_xoff), "s_mul_i32 s84, s82, %d" % (64 * WS),
                  "s_add_u32 s84, s84, %s" % sr(s_woff), "s_add_u32 s82, s82, 1", "s_and_b32 s82, s82, 7"]
        o.append("s_add_u32 m0, %s, %d" % (sr(S_W2K), slot_addr(u)))
        if k < NX:
            o.append("s_add_u32 %s, s83, %d" % (sr(S_TMP), k * XUS))
            v0_, v1_, srd, fl = vx0, vx1, srd_x, xflags
        else:
            cg, half = divmod(k - NX, 2)
            o.append("s_add_u32 %s, s84, %d" % (sr(S_TMP), (half * 32) * WS + cg * 256))
            v0_, v1_, srd, fl = vw0, vw1, srd_w, ""
        o.append("buffer_load_dwordx4 %s, %s, %s offen%s lds" % (vr(v0_), sr(srd, 4), sr(S_TMP), fl))
        o.append("buffer_load_dwordx4 %s, %s, %s offen offset:1024%s lds" % (vr(v1_), sr(srd, 4), sr(S_TMP), fl))
        o.append(lambda c=c: lastop.__setitem__(c, a.vm - 1))
        return o

    fstamp(a)
    nxt = min(NSLOT, total)
    for u in range(nxt):
        for x in issue(u):
            emit(a, x)
    if idle:
        idle()
    XF, WF = v_fr, v_fr + 32
    fstamp(a)
    for c in range(NCH):
        a.wait_vm(lastop[c])
        fstamp(a)
        a("s_barrier")
        fill = []
        if c >= 1:
            for _ in range(NU):
                if nxt < total:
                    fill += issue(nxt)
                    nxt += 1
        if extra:
            fill += extra(c, [((u + off) % NSLOT) for u in range(c * NU, total)])
        u0 = c * NU
        if NX == 2:
            a("s_mov_b32 %s, %d" % (sr(S_TMP2), slot_addr(u0)))
            a("s_cmp_eq_u32 %s, 0" % sr(s_xsel))
            a("s_cselect_b32 %s, %s, %d" % (sr(S_TMP2), sr(S_TMP2), slot_addr(u0 + 1)))
            xb = sr(S_TMP2)
        else:
            xb = "%d" % slot_addr(u0)
        reads = [[], []]
        for hf in range(2):
            rd = reads[hf]
            if NCG == 2:
                rd.append("s_mov_b32 %s, %d" % (sr(S_TMP3), slot_addr(u0 + NX + hf)))
                rd.append("s_cmp_eq_u32 %s, 0" % sr(s_wsel))
                rd.append("s_cselect_b32 %s, %s, %d" % (sr(S_TMP3), sr(S_TMP3), slot_addr(u0 + NX + 2 + hf)))
                wb = sr(S_TMP3)
            else:
                wb = "%d" % slot_addr(u0 + NX + hf)
            for k2 in range(2):
                s_ = hf * 2 + k2
                rd.append("v_add_u32 %s, %s, %s" % (vr(t0), xb, vr(px + s_)))
                for qbl in range(2):
                    rd.append("ds_read_b128 %s, %s offset:%d" % (vr(XF + (qbl * 4 + s_) * 4, 4), vr(t0), qbl * 4096))
            for dbl in range(2):
                for hr in range(2):
                    tt = t1 if hr else t0
                    rd.append("v_add_u32 %s, %s, %s" % (vr(tt), wb, vr(pw + dbl * 2 + hr)))
                    for k2 in range(2):
                        s_ = hf * 2 + k2
                        rd.append("ds_read_b64_tr_b16 %s, %s offset:%d" % (vr(WF + (dbl * 4 + s_) * 4 + 2 * hr, 2), vr(tt), k2 * 4096 + hr * 1024))
        for x in reads[0]:
            a(x)
        h = len(fill) // 3
        for x in fill[:h]:
            emit(a, x)
        a("s_waitcnt lgkmcnt(0)")
        interleave(a, mf(0, c, XF, WF, v_acc), reads[1])
        a("s_waitcnt lgkmcnt(0)")
        interleave(a, mf(1, c, XF, WF, v_acc), fill[h:])


def mf(hf, c, XF, WF, v_acc):
    out = []
    for k2 in range(2):
        s_ = hf * 2 + k2
        for dbl in range(2):
            for qbl in range(2):
                acc = vr(v_acc + (dbl * 2 + qbl) * 16, 16)
                out.append("v_mfma_f32_32x32x16_bf16 %s, %s, %s, %s" % (acc, vr(WF + (dbl * 4 + s_) * 4, 4), vr(XF + (qbl * 4 + s_) * 4, 4),
                                                                       "0" if (c == 0 and s_ == 0) else acc))
    return out


def dma_unit(a, srd, s_m0_base, slot_imm, s_goff, lst=None):
    out = []
    nt = " nt" if slot_imm else ""
    for g in range(2):
        if g == 0:
            out.append("s_mov_b32 m0, %s" % sr(s_m0_base))
            out.append("s_mov_b32 %s, %s" % (sr(S_TMP), sr(s_goff)))
        else:
            out.append("s_add_u32 m0, %s, 4096" % sr(s_m0_base))
            out.append("s_add_u32 %s, %s, 4096" % (sr(S_TMP), sr(s_goff)))
        for n in range(4):
            out.append("buffer_load_dwordx4 %s, %s, %s offen offset:%d%s lds" % (vr(V_DMA + n), sr(srd, 4), sr(S_TMP), n * 1024, nt))
    return out


def softmax_ops(j, sb, tag):
    f = []
    t0, t1, t2, t3, t4 = V_T0, V_T0 + 1, V_T0 + 2, V_T0 + 3, V_T0 + 4
    s = lambda i: vr(sb + i)
    f.append("v_max3_f32 %s, %s, %s, %s" % (vr(t0), s(0), s(1), s(2)))
    f.append("v_max3_f32 %s, %s, %s, %s" % (vr(t1), s(3), s(4), s(5)))
    f.append("v_max3_f32 %s, %s, %s, %s" % (vr(t2), s(6), s(7), s(8)))
    f.append("v_max3_f32 %s, %s, %s, %s" % (vr(t3), s(9), s(10), s(11)))
    f.append("v_max3_f32 %s, %s, %s, %s" % (vr(t4), s(12), s(13), s(14)))
    f.append("v_max3_f32 %s, %s, %s, %s" % (vr(t0), vr(t0), vr(t1), s(15)))
    f.append("v_max3_f32 %s, %s, %s, %s" % (vr(t2), vr(t2), vr(t3), vr(t4)))
    f.append("v_max_f32 %s, %s, %s" % (vr(V_TMAX), vr(t0), vr(t2)))
    f.append("v_cmp_lt_f32 vcc, %s, %s" % (sr(S_THR), vr(V_TMAX)))
    f.append("s_cbranch_vccnz L_slow_%s\nL_back_%s:" % (tag, tag))
    for i in range(16):
        f.append("v_exp_f32 %s, %s" % (s(i), s(i)))
        if i >= 3 and i % 2 == 1:
            p = (i - 3) // 2
            f.append("v_cvt_pk_bf16_f32 %s, %s, %s" % (s(p), s(2 * p), s(2 * p + 1)))
    f.append("s_nop 0")
    f.append("v_cvt_pk_bf16_f32 %s, %s, %s" % (s(7), s(14), s(15)))
    return f


def slow_path(a, j, sb, tag):
    t0, t1, t2 = V_T0, V_T0 + 1, V_T0 + 2
    a.label("L_slow_%s" % tag)
    a("v_mov_b32 %s, %s" % (vr(t0), vr(V_TMAX)))
    a("v_mov_b32 %s, %s" % (vr(t1), vr(V_TMAX)))
    a("s_nop 1")
    a("v_permlane32_swap_b32 %s, %s" % (vr(t0), vr(t1)))
    a("s_nop 1")
    a("v_max_f32 %s, %s, %s" % (vr(t0), vr(t0), vr(t1)))
    a("s_cmp_eq_u32 %s, 0" % sr(S_T))
    a("s_cbranch_scc1 L_slow2_%s" % tag)
    a("v_max_f32 %s, 0, %s" % (vr(t0), vr(t0)))
    a("v_sub_f32 %s, 0, %s" % (vr(t1), vr(t0)))
    a("v_exp_f32 %s, %s" % (vr(t1), vr(t1)))
    a("s_nop 7")
    a("s_nop 7")
    regs = list(range(j * 64, j * 64 + 64)) + list(range(A_L + 16 * j, A_L + 16 * j + 4))
    for r in range(0, len(regs), 4):
        for q in range(4):
            a("v_accvgpr_read_b32 %s, %s" % (vr(t2 + q), ar(regs[r + q])))
        for q in range(4):
            a("v_mul_f32 %s, %s, %s" % (vr(t2 + q), vr(t2 + q), vr(t1)))
        for q in range(4):
            a("v_accvgpr_write_b32 %s, %s" % (ar(regs[r + q]), vr(t2 + q)))
    a.label("L_slow2_%s" % tag)
    for i in range(16):
        a("v_sub_f32 %s, %s, %s" % (vr(sb + i), vr(sb + i), vr(t0)))
    for i in range(16):
        a("v_sub_f32 %s, %s, %s" % (vr(V_CM + 16 * j + i), vr(V_CM + 16 * j + i), vr(t0)))
    a("s_nop 1")
    a("s_branch L_back_%s" % tag)


def qk_mfmas(j, sb):
    out = []
    for s in range(8):
        d = vr(sb, 16)
        out.append("v_mfma_f32_32x32x16_bf16 %s, %s, %s, %s" % (d, vr(V_KF + 4 * s, 4), vr(V_Q + (j * 8 + s) * 4, 4), vr(V_CM + 16 * j, 16) if s == 0 else d))
    return out


def pv_mfmas(j, sb):
    out = []
    for ks in range(2):
        for db in range(4):
            o = ar(j * 64 + db * 16, 16)
            out.append("v_mfma_f32_32x32x16_bf16 %s, %s, %s, %s" % (o, vr(V_VF + (db * 2 + ks) * 4, 4), vr(sb + 4 * ks, 4), o))
        l = ar(A_L + 16 * j, 16)
        out.append("v_mfma_f32_32x32x16_bf16 %s, %s, %s, %s" % (l, vr(V_ONES, 4), vr(sb + 4 * ks, 4), l))
    return out


def stamp(a, idx, srd=None, base=0):
    if not OPT["stamp"]:
        return
    a("s_memrealtime s[90:91]")
    a("s_memtime s[94:95]")
    a("s_waitcnt lgkmcnt(0)")
    a("s_lshl_b32 s92, s2, 2")
    a("s_add_u32 s92, s92, %s" % sr(S_WAVE))
    a("s_lshl_b32 s92, s92, 6")
    a("s_add_u32 s92, s92, %d" % ((16 << 20) + base + idx * 4))
    a("v_mov_b32 v25, s90")
    a("v_mov_b32 v24, 0")
    a("buffer_store_dword v25, v24, s[96:99], s92 offen")
    a("v_mov_b32 v23, s94")
    a("buffer_store_dword v23, v24, s[96:99], s92 offen offset:32")
    a.vm += 2


FINE = [0]
def fstamp(a):
    if not OPT["fine"]:
        return
    a("s_memtime s[90:91]")
    a("s_waitcnt lgkmcnt(0)")
    a("v_writelane_b32 v250, s90, %d" % FINE[0])
    FINE[0] += 1


def fdump(a):
    if not OPT["fine"]:
        return
    a("s_lshl_b32 s92, s2, 2")
    a("s_add_u32 s92, s92, %s" % sr(S_WAVE))
    a("s_lshl_b32 s92, s92, 8")
    a("s_add_u32 s92, s92, %d" % (29 << 20))
    a("v_lshlrev_b32 v251, 2, v0")
    a("buffer_store_dword v250, v251, s[96:99], s92 offen")
    a.vm += 1
    FINE[0] = 1


def stamp_srd(a, lo, hi):
    if not OPT["stamp"]:
        return
    a("s_mov_b32 s96, %s" % lo)
    a("s_mov_b32 s97, %s" % hi)
    a("s_mov_b32 s98, %d" % (32 << 20))
    a("s_mov_b32 s99, 0x00020000")


A_WO = 160
V_W0 = 252


def job_params(a):
    a("s_lshr_b32 s45, s2, 3")
    a("s_bfe_u32 s77, s45, 0x20002")
    a("s_and_b32 s78, s45, 3")
    a("s_mov_b32 %s, %s" % (sr(S_W), sr(S_P + 8)))
    a("s_mov_b32 %s, %s" % (sr(S_W + 1), sr(S_P + 9)))
    a("s_lshl_b32 %s, s3, 19" % sr(S_WOFF))
    a("s_lshl_b32 s59, s78, 8")
    a("s_add_u32 %s, %s, s59" % (sr(S_WOFF), sr(S_WOFF)))
    t0, t1 = 246, 247
    a("v_lshrrev_b32 %s, 4, %s" % (vr(t0), vr(V_LANE)))
    a("v_and_b32 %s, 15, %s" % (vr(t1), vr(V_LANE)))
    a("v_lshlrev_b32 %s, 2, %s" % (vr(V_W0), vr(t0)))
    a("v_xor_b32 %s, %s, %s" % (vr(t1), vr(t1), vr(V_W0)))
    a("s_lshl_b32 %s, %s, 1" % (sr(S_TMP), sr(S_WAVE)))
    a("s_and_b32 %s, %s, 3" % (sr(S_TMP), sr(S_TMP)))
    a("v_xor_b32 %s, %s, %s" % (vr(t1), sr(S_TMP), vr(t1)))
    a("v_lshlrev_b32 %s, 4, %s" % (vr(t1), vr(t1)))
    a("s_lshl_b32 %s, %s, 3" % (sr(S_TMP), sr(S_WAVE)))
    a("v_add_u32 %s, %s, %s" % (vr(t0), sr(S_TMP), vr(t0)))
    a("v_lshlrev_b32 %s, 10, %s" % (vr(t0), vr(t0)))
    a("v_add_u32 %s, %s, %s" % (vr(V_W0), vr(t0), vr(t1)))
    a("v_xor_b32 %s, 16, %s" % (vr(t1), vr(t1)))
    a("v_add_u32 %s, %s, %s" % (vr(V_W0 + 1), vr(t0), vr(t1)))
    a("v_add_u32 %s, %d, %s" % (vr(V_W0 + 1), 4 * 1024 - 1024, vr(V_W0 + 1)))


def wo_blocks(a, tag):
    for b in range(4):
        a.label("L_wo%d_%s" % (b, tag))
        for u in range(4 * b, 4 * b + 4):
            a("s_add_u32 %s, %s, %d" % (sr(S_TMP), sr(S_WOFF), u * 32 * 1024))
            if u < 12:
                a("buffer_load_dwordx4 %s, %s, %s, %s offen" % (ar(A_WO + 8 * u, 4), vr(V_W0), sr(S_W, 4), sr(S_TMP)))
                a("buffer_load_dwordx4 %s, %s, %s, %s offen offset:1024" % (ar(A_WO + 8 * u + 4, 4), vr(V_W0 + 1), sr(S_W, 4), sr(S_TMP)))
            else:
                a("s_add_u32 m0, %s, %d" % (sr(S_W2K), SCR + (u - 12) * 8192))
                a("s_nop 0")
                a("buffer_load_dwordx4 %s, %s, %s offen lds" % (vr(V_W0), sr(S_W, 4), sr(S_TMP)))
                a("buffer_load_dwordx4 %s, %s, %s offen offset:1024 lds" % (vr(V_W0 + 1), sr(S_W, 4), sr(S_TMP)))
        a("s_branch L_woback%d_%s" % (b & 1, tag))


def dma_list(srd, lds_off, nt):
    out = []
    for g in range(2):
        out.append("s_add_u32 m0, %s, %d" % (sr(S_RING), lds_off + g * 4096))
        if g == 0:
            out.append("s_nop 0")
            so = S_PF
        else:
            out.append("s_add_u32 %s, %s, 4096" % (sr(S_TMP), sr(S_PF)))
            so = S_TMP
        for n in range(4):
            out.append("buffer_load_dwordx4 %s, %s, %s offen offset:%d%s lds" % (vr(V_DMA + n), sr(srd, 4), sr(so), n * 1024, " nt" if nt else ""))
    return out


def k_reads(par):
    return ["ds_read_b128 %s, %s offset:%d" % (vr(V_KF + 4 * s, 4), vr(V_KAD + s), par * 16384) for s in range(8)]


def tile_loop(a, tag, nt):
    a("s_mov_b32 %s, 0" % sr(S_T))
    a.label("L_tile_%s" % tag)
    SB = lambda j: V_S + 16 * (j & 1)
    for par in range(2):
        tg = "%s%d" % (tag, par)
        vreads = []
        for db in range(4):
            for hr in range(2):
                for ks in range(2):
                    vreads.append("ds_read_b64_tr_b16 %s, %s offset:%d" % (
                        vr(V_VF + (db * 2 + ks) * 4 + 2 * hr, 2), vr(V_VAD + db * 2 + hr), 8192 + par * 16384 + ks * 4096 + hr * 2048))
        kd = dma_list(S_K, par * 16384, nt)
        vd = dma_list(S_V, 8192 + par * 16384, nt)
        a("s_waitcnt vmcnt(16) lgkmcnt(0)")
        fa = []
        for i in range(8):
            fa += vreads[2 * i:2 * i + 2]
            if i == 3:
                fa.append("s_waitcnt lgkmcnt(4)")
        interleave(a, qk_mfmas(0, SB(0)), fa[:9] + kd[:3] + fa[9:] + kd[3:6])
        interleave(a, qk_mfmas(1, SB(1)), kd[6:] + ["s_nop 3"] + softmax_ops(0, SB(0), tg + "0"))
        a("s_waitcnt lgkmcnt(0)")
        a("s_nop 0")
        sm1 = softmax_ops(1, SB(1), tg + "1")
        interleave(a, pv_mfmas(0, SB(0)), vd[:6] + ["s_nop 3"] + sm1[:10] + vd[6:9] + sm1[10:22] + vd[9:] + sm1[22:])
        a("s_nop 1")
        tail = ["s_add_u32 %s, %s, 16384" % (sr(S_PF), sr(S_PF)),
                "s_add_u32 %s, %s, 1" % (sr(S_T), sr(S_T)),
                "s_mov_b32 %s, %s" % (sr(S_THR), sr(S_T8)),
                "s_waitcnt vmcnt(24)"] + k_reads(1 - par)
        interleave(a, pv_mfmas(1, SB(1)), tail)
    a("s_cmp_lt_u32 %s, 16" % sr(S_T))
    a("s_cbranch_scc1 L_tile_%s" % tag)
    a("s_waitcnt lgkmcnt(0)")


PERM = [0, 2, 1, 3]


def half_unit(srd, lds_off, goff_imm=None):
    out = ["s_add_u32 m0, %s, %d" % (sr(S_RING2), lds_off)]
    if goff_imm is None:
        out.append("s_nop 0")
        so = S_PF
    else:
        out.append("s_add_u32 %s, %s, %d" % (sr(S_TMP), sr(S_PF), goff_imm))
        so = S_TMP
    for n in range(4):
        out.append("buffer_load_dwordx4 %s, %s, %s offen offset:%d lds" % (vr(V_DMA + n), sr(srd, 4), sr(so), n * 1024))
    return out


def k_reads_s(slot):
    return ["ds_read_b128 %s, %s offset:%d" % (vr(V_KF + 4 * s, 4), vr(V_KAD + s), slot * 16384) for s in range(8)]


def tile_loop_shared(a, tag):
    a("s_mov_b32 %s, 0" % sr(S_T))
    a.label("L_tile_%s" % tag)
    for b in range(4):
        pass
    SB = lambda j: V_S + 16 * (j & 1)
    for u in range(4):
        tg = "%s%d" % (tag, u)
        if u % 2 == 0:
            for b in range(2):
                a("s_cmp_eq_u32 %s, %d" % (sr(S_T), 4 * b + 4 + u))
                a("s_cbranch_scc1 L_wo%d_%s" % (2 * b + u // 2, tag))
            a.label("L_woback%d_%s" % (u // 2, tag))
        slot, nslot, fslot = PERM[u], PERM[(u + 1) & 3], PERM[(u + 3) & 3]
        vreads = []
        for db in range(4):
            for hr in range(2):
                for ks in range(2):
                    vreads.append("ds_read_b64_tr_b16 %s, %s offset:%d" % (
                        vr(V_VF + (db * 2 + ks) * 4 + 2 * hr, 2), vr(V_VAD + db * 2 + hr), 8192 + slot * 16384 + ks * 4096 + hr * 2048))
        kd = half_unit(S_K, fslot * 16384)
        vd = half_unit(S_V, fslot * 16384 + 8192)
        a("s_waitcnt vmcnt(12) lgkmcnt(0)")
        a("s_barrier")
        fa = []
        for i in range(8):
            fa += vreads[2 * i:2 * i + 2]
            if i == 3:
                fa.append("s_waitcnt lgkmcnt(4)")
        interleave(a, qk_mfmas(0, SB(0)), fa + kd[:3])
        interleave(a, qk_mfmas(1, SB(1)), kd[3:] + ["s_nop 7"] + softmax_ops(0, SB(0), tg + "0"))
        a("s_waitcnt lgkmcnt(0)")
        a("s_nop 0")
        sm1 = softmax_ops(1, SB(1), tg + "1")
        interleave(a, pv_mfmas(0, SB(0)), vd + ["s_nop 3"] + sm1)
        a("s_nop 1")
        tail = ["s_add_u32 %s, %s, 16384" % (sr(S_PF), sr(S_PF)),
                "s_add_u32 %s, %s, 1" % (sr(S_T), sr(S_T)),
                "s_mov_b32 %s, %s" % (sr(S_THR), sr(S_T8))] + k_reads_s(nslot)
        interleave(a, pv_mfmas(1, SB(1)), tail)
    a("s_cmp_lt_u32 %s, 16" % sr(S_T))
    a("s_cbranch_scc1 L_tile_%s" % tag)
    a("s_waitcnt vmcnt(0) lgkmcnt(0)")
    a("s_barrier")


def init_pass(a):
    for r in range(32):
        a("v_mov_b32 %s, 0" % vr(V_CM + r))
    for r in range(4):
        a("v_mov_b32 %s, 0x3f803f80" % vr(V_ONES + r))
    a("s_mov_b32 %s, 0xff800000" % sr(S_THR))
    a("s_nop 1")
    for r in range(0, 160, 16):
        a("v_mfma_f32_32x32x16_bf16 %s, %s, %s, 0" % (ar(r, 16), vr(V_CM, 4), vr(V_CM, 4)))


def combine2(a, tag, stflags=""):
    t = V_T0
    F, AD, RB, OWN, OUT = 32, 40, 64, 128, 192
    a("s_nop 7")
    a("s_nop 7")
    for j in range(2):
        a("v_accvgpr_read_b32 %s, %s" % (vr(t + 3 + 2 * j), ar(A_L + 16 * j)))
        a("v_sub_f32 %s, 0, %s" % (vr(t + 2 + 2 * j), vr(V_CM + 16 * j)))
    a("s_add_u32 %s, %s, 16384" % (sr(S_TMP), sr(S_RING)))
    a("v_lshlrev_b32 %s, 3, %s" % (vr(AD), vr(V_LANE)))
    a("v_add_u32 %s, %s, %s" % (vr(AD + 1), sr(S_TMP), vr(AD)))
    a("v_add_u32 %s, %s, %s" % (vr(AD + 2), sr(S_RING), vr(V_L16)))
    a("v_xor_b32 %s, 32768, %s" % (vr(AD + 3), vr(AD + 2)))
    a("s_waitcnt vmcnt(0)")
    a("ds_write_b64 %s, %s" % (vr(AD + 1), vr(t + 2, 2)))
    a("ds_write_b64 %s, %s offset:512" % (vr(AD + 1), vr(t + 4, 2)))
    a("v_xor_b32 %s, 32768, %s" % (vr(AD + 1), vr(AD + 1)))
    a("s_cmp_eq_u32 s47, 1")
    a("s_cbranch_scc1 L_cmb1_%s" % tag)
    for e in range(2):
        if e == 1:
            a.label("L_cmb1_%s" % tag)
        k = 0
        for j in range(2):
            for dd in range(2):
                for q in range(4):
                    a("ds_write_b128 %s, %s offset:%d" % (vr(AD + 2), ar(j * 64 + (2 * (1 - e) + dd) * 16 + 4 * q, 4),
                                                         k * 1024))
                    k += 1
        for j in range(2):
            for dd in range(2):
                for r in range(16):
                    a("v_accvgpr_read_b32 %s, %s" % (vr(OWN + (j * 2 + dd) * 16 + r), ar(j * 64 + (2 * e + dd) * 16 + r)))
        if e == 0:
            a("s_branch L_cmb2_%s" % tag)
    a.label("L_cmb2_%s" % tag)
    a("s_waitcnt lgkmcnt(0)")
    a("s_barrier")
    a("ds_read_b64 %s, %s" % (vr(F + 4, 2), vr(AD + 1)))
    a("ds_read_b64 %s, %s offset:512" % (vr(F + 6, 2), vr(AD + 1)))
    for k in range(12):
        a("ds_read_b128 %s, %s offset:%d" % (vr(RB + 4 * k, 4), vr(AD + 3), k * 1024))
    a("s_waitcnt lgkmcnt(12)")
    for j in range(2):
        mo, lo, mp, lp = t + 2 + 2 * j, t + 3 + 2 * j, F + 4 + 2 * j, F + 5 + 2 * j
        fo, fp = F + 2 * j, F + 2 * j + 1
        a("v_max_f32 %s, %s, %s" % (vr(t), vr(mo), vr(mp)))
        a("v_sub_f32 %s, %s, %s" % (vr(fo), vr(mo), vr(t)))
        a("v_sub_f32 %s, %s, %s" % (vr(fp), vr(mp), vr(t)))
        a("v_exp_f32 %s, %s" % (vr(fo), vr(fo)))
        a("v_exp_f32 %s, %s" % (vr(fp), vr(fp)))
        a("s_nop 0")
        a("v_mul_f32 %s, %s, %s" % (vr(t + 1), vr(fo), vr(lo)))
        a("v_fmac_f32 %s, %s, %s" % (vr(t + 1), vr(fp), vr(lp)))
        a("v_rcp_f32 %s, %s" % (vr(t + 1), vr(t + 1)))
        a("s_nop 0")
        a("v_mul_f32 %s, %s, %s" % (vr(fo), vr(fo), vr(t + 1)))
        a("v_mul_f32 %s, %s, %s" % (vr(fp), vr(fp), vr(t + 1)))
    for k in range(12, 16):
        a("ds_read_b128 %s, %s offset:%d" % (vr(RB + 4 * k, 4), vr(AD + 3), k * 1024))
    a("s_add_u32 %s, %s, 4096" % (sr(S_TMP), sr(S_OOFF)))
    for j in range(2):
        for dd in range(2):
            g = j * 2 + dd
            for r in range(16):
                a("v_mul_f32 %s, %s, %s" % (vr(OWN + g * 16 + r), vr(F + 2 * j), vr(OWN + g * 16 + r)))
            a("s_waitcnt lgkmcnt(%d)" % (12 - 4 * g))
            for r in range(16):
                a("v_fmac_f32 %s, %s, %s" % (vr(OWN + g * 16 + r), vr(F + 2 * j + 1), vr(RB + g * 16 + r)))
            for half in range(2):
                o4 = OUT + (g * 2 + half) * 4
                for e in range(4):
                    a("v_cvt_pk_bf16_f32 %s, %s, %s" % (vr(o4 + e), vr(OWN + g * 16 + half * 8 + 2 * e), vr(OWN + g * 16 + half * 8 + 2 * e + 1)))
                a("buffer_store_dwordx4 %s, %s, %s, %s offen offset:%d%s" % (vr(o4, 4), vr(V_L16), sr(S_O, 4),
                                                                           sr(S_TMP if j else S_OOFF), (dd * 2 + half) * 1024, stflags))


def poll(a, tag, s_off, nflags):
    a("v_lshlrev_b32 v246, 3, %s" % vr(V_LANE))
    a("v_min_u32 v246, %d, v246" % ((nflags - 1) * 8))
    a("s_mov_b32 s85, 0")
    a.label("L_poll_%s" % tag)
    a("buffer_load_dwordx2 v[248:249], v246, %s, %s offen sc1" % (sr(S_O, 4), sr(s_off)))
    a("s_add_u32 s85, s85, 1")
    a("s_waitcnt vmcnt(0)")
    a("v_cmp_ne_u64 vcc, v[248:249], %s" % vr(V_NONCE, 2))
    a("s_cbranch_vccz L_pdone_%s" % tag)
    a("s_sleep 2")
    a("s_cmp_lt_u32 s85, %d" % OPT["spin"])
    a("s_cbranch_scc1 L_poll_%s" % tag)
    a.label("L_pdone_%s" % tag)


def signal(a, s_off):
    a("s_waitcnt vmcnt(0)")
    a("v_mov_b32 v246, 0")
    a("s_mov_b64 exec, 1")
    a("buffer_store_dwordx2 %s, v246, %s, %s offen sc1" % (vr(V_NONCE, 2), sr(S_O, 4), sr(s_off)))
    a("s_mov_b64 exec, -1")


PWB = 160
WF, V_ACC = 32, 96


def g_setup(a):
    t0, t1, t2 = 8, 9, 10
    L = V_LANE
    a("v_lshlrev_b32 v1, 4, v0")
    a("v_add_u32 v2, %s, v1" % sr(S_W2K))
    a("v_add_u32 v3, 65536, v2")
    a("v_bfe_u32 %s, %s, 4, 1" % (vr(t0), vr(L)))
    a("v_and_b32 %s, 1, %s" % (vr(t1), vr(L)))
    a("v_lshl_add_u32 %s, %s, 1, %s" % (vr(t0), vr(t0), vr(t1)))
    a("v_lshrrev_b32 %s, 5, %s" % (vr(t1), vr(L)))
    a("v_lshlrev_b32 %s, 1, %s" % (vr(t2), vr(t1)))
    a("v_xor_b32 %s, %s, %s" % (vr(t0), vr(t0), vr(t2)))
    a("v_bfe_u32 %s, %s, 2, 2" % (vr(t2), vr(L)))
    a("v_lshl_add_u32 %s, %s, 2, %s" % (vr(t0), vr(t2), vr(t0)))
    a("v_lshlrev_b32 %s, 4, %s" % (vr(t0), vr(t0)))
    a("v_lshl_add_u32 %s, %s, 3, %s" % (vr(t1), vr(t1), vr(t2)))
    a("v_lshl_add_u32 %s, %s, 8, %s" % (vr(t0), vr(t1), vr(t0)))
    a("v_bfe_u32 %s, %s, 1, 1" % (vr(t1), vr(L)))
    a("v_lshl_add_u32 %s, %s, 3, %s" % (vr(PWB), vr(t1), vr(t0)))
    for k in range(1, 8):
        a("v_xor_b32 %s, %d, %s" % (vr(PWB + k), (k >> 1) * 64 + (k & 1) * 16, vr(PWB)))
    for k in range(8):
        a("v_add_u32 %s, 65536, %s" % (vr(PWB + 8 + k), vr(PWB + k)))
        a("v_add_u32 %s, 131072, %s" % (vr(PWB + 16 + k), vr(PWB + k)))
    a("v_lshlrev_b32 v11, 3, %s" % vr(V_LANE))
    a("v_min_u32 v11, 56, v11")


def g_params(a, p):
    a("s_and_b32 s60, s45, 15")
    a("s_add_u32 s60, s60, %d" % (16 * p))
    a("s_lshl_b32 s61, s77, 1")
    a("s_add_u32 s61, s61, s46")
    a("s_add_u32 s61, s61, %d" % (8 * p))
    a("s_lshl_b32 s61, s61, 3")
    a("s_add_u32 s61, s61, s3")
    a("s_lshl_b32 s61, s61, 3")
    a("s_lshl_b32 %s, s61, 13" % sr(S_XOFF))
    a("s_lshl_b32 s59, s47, 12")
    a("s_add_u32 %s, %s, s59" % (sr(S_XOFF), sr(S_XOFF)))
    a("s_lshl_b32 s61, s61, 3")
    a("s_add_u32 s61, s61, %d" % FLAG_O)
    a("s_mov_b32 s85, 0")
    a("s_mov_b32 s83, 0xff")
    for r in range(4):
        a("v_mov_b32 %s, 0" % vr(WF + r))
    a("s_nop 1")
    for k in range(4):
        a("v_mfma_f32_32x32x16_bf16 %s, %s, %s, 0" % (vr(V_ACC + 16 * k, 16), vr(WF, 4), vr(WF, 4)))


def g_run(a, tag, st):
    def xloads(c):
        a("s_add_u32 %s, %s, %d" % (sr(S_TMP), sr(S_XOFF), c * 8192))
        for k in range(4):
            a("buffer_load_dwordx4 %s, v1, %s, %s offen offset:%d sc1" % (ar(c * 16 + 4 * k, 4), sr(S_O, 4), sr(S_TMP), k * 1024))

    def wreads(c, s_, wf):
        o = (2 * c + (s_ >> 1)) * 8192
        if o >= 98304:
            o += 32768
        pb = PWB + 8 * (o >> 16)
        o = (o & 65535) + (s_ & 1) * 4096
        return ["ds_read_b64_tr_b16 %s, %s offset:%d" % (vr(wf + db * 4 + 2 * hr, 2), vr(pb + db * 2 + hr), o + hr * 1024)
                for db in range(4) for hr in range(2)]

    def mfm(c, s_, wf):
        return ["v_mfma_f32_32x32x16_bf16 %s, %s, %s, %s" % (vr(V_ACC + db * 16, 16), vr(wf + db * 4, 4), ar(c * 16 + s_ * 4, 4), vr(V_ACC + db * 16, 16))
                for db in range(4)]

    wfb = lambda i: WF + 16 * (i & 3)

    a.label("L_ground_%s" % tag)
    a("buffer_load_dwordx2 v[248:249], v11, %s, s61 offen sc1" % sr(S_O, 4))
    a("s_add_u32 s85, s85, 1")
    a("s_waitcnt vmcnt(0)")
    a("v_cmp_eq_u64 vcc, v[248:249], %s" % vr(V_NONCE, 2))
    a("s_cmp_ge_u32 s85, %d" % OPT["spin"])
    a("s_cselect_b32 s82, 0xff, vcc_lo")
    a("s_and_b32 s82, s82, s83")
    a("s_cbranch_scc1 L_gwork_%s" % tag)
    a("s_sleep 2")
    a("s_branch L_ground_%s" % tag)
    a.label("L_gwork_%s" % tag)
    a("s_cmp_eq_u32 s82, 0xff")
    a("s_cbranch_scc1 L_gfast_%s" % tag)
    for c in range(8):
        a("s_bitcmp1_b32 s82, %d" % c)
        a("s_cbranch_scc0 L_gl%d_%s" % (c, tag))
        xloads(c)
        a.label("L_gl%d_%s" % (c, tag))
    a("s_waitcnt vmcnt(0)")
    for c in range(8):
        a("s_bitcmp1_b32 s82, %d" % c)
        a("s_cbranch_scc0 L_gm%d_%s" % (c, tag))
        for x in wreads(c, 0, wfb(0)):
            a(x)
        for s_ in range(4):
            nx = wreads(c, s_ + 1, wfb(s_ + 1)) if s_ < 3 else []
            for x in nx[:4]:
                a(x)
            a("s_waitcnt lgkmcnt(%d)" % (4 if nx else 0))
            interleave(a, mfm(c, s_, wfb(s_)), nx[4:])
        a.label("L_gm%d_%s" % (c, tag))
    a("s_andn2_b32 s83, s83, s82")
    a("s_cbranch_scc1 L_ground_%s" % tag)
    a("s_branch L_gdone_%s" % tag)
    a.label("L_gfast_%s" % tag)
    for c in range(8):
        xloads(c)
    for x in wreads(0, 0, wfb(0)):
        a(x)
    for i in range(32):
        c, s_ = i >> 2, i & 3
        nx = wreads((i + 1) >> 2, (i + 1) & 3, wfb(i + 1)) if i < 31 else []
        for x in nx[:4]:
            a(x)
        if s_ == 0:
            a("s_waitcnt vmcnt(%d) lgkmcnt(%d)" % (4 * (7 - c), 4 if nx else 0))
        else:
            a("s_waitcnt lgkmcnt(%d)" % (4 if nx else 0))
        interleave(a, mfm(c, s_, wfb(i)), nx[4:])
    a.label("L_gdone_%s" % tag)
    a("s_lshl_b32 s59, s60, 3")
    a("s_add_u32 s59, s59, s3")
    a("s_lshl_b32 s59, s59, 15")
    a("s_lshl_b32 s62, %s, 13" % sr(S_WAVE))
    a("s_add_u32 s59, s59, s62")
    a("s_add_u32 s59, s59, %d" % (8 << 20))
    a("s_add_u32 s62, s59, 4096")
    a("s_nop 7")
    for k in range(8):
        for e in range(4):
            a("v_cvt_pk_bf16_f32 %s, %s, %s" % (vr(192 + 4 * k + e), vr(V_ACC + 8 * k + 2 * e), vr(V_ACC + 8 * k + 2 * e + 1)))
        a("buffer_store_dwordx4 %s, v1, %s, %s offen offset:%d sc1" % (vr(192 + 4 * k, 4), sr(S_O, 4), "s59" if k < 4 else "s62", (k % 4) * 1024))
    a("s_lshl_b32 s63, s60, 2")
    a("s_add_u32 s63, s63, %s" % sr(S_WAVE))
    a("s_lshl_b32 s63, s63, 3")
    a("s_add_u32 s63, s63, s3")
    a("s_lshl_b32 s63, s63, 3")
    a("s_add_u32 s63, s63, %d" % FLAG_P)


def rjob(a, p, tag):
    a("s_and_b32 s60, s45, 15")
    a("s_add_u32 s60, s60, %d" % (16 * p))
    a("s_lshl_b32 s88, s60, 2")
    a("s_lshr_b32 s59, s3, 1")
    a("s_add_u32 s88, s88, s59")
    a("s_lshl_b32 s88, s88, 6")
    a("s_add_u32 s88, s88, %d" % FLAG_P)
    a("s_lshl_b32 s17, s3, 2")
    a("s_add_u32 s17, s17, %s" % sr(S_WAVE))
    a("s_lshl_b32 s18, s60, 18")
    a("s_lshl_b32 s19, s17, 10")
    a("s_add_u32 s18, s18, s19")
    a("s_add_u32 s18, s18, %d" % (8 << 20))
    a("s_lshl_b32 s12, s77, 7")
    a("s_lshr_b32 s13, s17, 3")
    a("s_lshl_b32 s13, s13, 5")
    a("s_add_u32 s12, s12, s13")
    a("s_lshl_b32 s12, s12, 11")
    a("s_lshl_b32 s13, s78, 8")
    a("s_add_u32 s12, s12, s13")
    a("s_and_b32 s13, s17, 7")
    a("s_lshl_b32 s13, s13, 5")
    a("s_add_u32 s12, s12, s13")
    a("s_add_u32 s12, s12, %d" % (p * 1024))
    a("v_lshlrev_b32 v1, 4, v0")
    a("v_and_b32 v2, 31, v0")
    a("v_lshlrev_b32 v2, 11, v2")
    a("v_lshrrev_b32 v3, 5, v0")
    a("v_lshl_add_u32 v2, v3, 4, v2")
    a("s_mov_b32 s14, 0xffff0000")
    poll(a, "p" + tag, 88, 8)
    for k in range(8):
        a("buffer_load_dwordx4 %s, v1, %s, s18 offen sc1" % (vr(64 + 4 * k, 4), sr(S_O, 4)))
        a("s_add_u32 s18, s18, 32768")
    for k in range(8):
        a("s_waitcnt vmcnt(%d)" % (7 - k))
        for e in range(4):
            src = vr(64 + 4 * k + e)
            d = 8 if k == 0 else 16
            a("v_lshlrev_b32 %s, 16, %s" % (vr(d + 2 * e), src))
            a("v_and_b32 %s, s14, %s" % (vr(d + 1 + 2 * e), src))
        if k:
            for e in range(8):
                a("v_add_f32 %s, %s, %s" % (vr(8 + e), vr(8 + e), vr(16 + e)))
    for e in range(4):
        a("v_cvt_pk_bf16_f32 %s, %s, %s" % (vr(4 + e), vr(8 + 2 * e), vr(9 + 2 * e)))
    a("buffer_store_dwordx4 v[4:7], v2, %s, s12 offen" % sr(S_OUT, 4))


def tail_a(a):
    g_setup(a)
    a("s_barrier")
    for u in range(12):
        for hh in range(2):
            o = u * 8192 + hh * 1024
            a("ds_write_b128 %s, %s offset:%d" % ("v2" if o < 65536 else "v3", ar(A_WO + 8 * u + 4 * hh, 4), o & 65535))
        if u % 4 == 3:
            a("s_waitcnt lgkmcnt(4)")
    g_params(a, 0)
    signal(a, S_OFLAG)
    stamp(a, 6)
    a("s_waitcnt lgkmcnt(0)")
    a("s_barrier")
    g_run(a, "a", None)
    a("s_barrier")
    a("s_mov_b32 %s, s64" % sr(S_W))
    a("s_mov_b32 %s, s65" % sr(S_W + 1))
    for u in range(16):
        a("s_add_u32 m0, %s, %d" % (sr(S_W2K), u * 8192 + (32768 if u >= 12 else 0)))
        a("s_add_u32 %s, %s, %d" % (sr(S_TMP), sr(S_WOFF), u * 32 * 1024))
        a("buffer_load_dwordx4 %s, %s, %s offen lds" % (vr(V_W0), sr(S_W, 4), sr(S_TMP)))
        a("buffer_load_dwordx4 %s, %s, %s offen offset:1024 lds" % (vr(V_W0 + 1), sr(S_W, 4), sr(S_TMP)))
        if u == 3:
            a("s_waitcnt vmcnt(8)")
            a("v_mov_b32 v246, 0")
            a("s_mov_b64 exec, 1")
            a("buffer_store_dwordx2 %s, v246, %s, s63 offen sc1" % (vr(V_NONCE, 2), sr(S_O, 4)))
            a("s_mov_b64 exec, -1")
    stamp(a, 3)
    g_params(a, 1)
    a("s_waitcnt vmcnt(0)")
    a("s_barrier")
    stamp(a, 4)
    g_run(a, "b", None)
    signal(a, 63)
    stamp(a, 7)


def kernel1(a):
    a.label(K1NAME)
    a("s_cmp_ge_u32 s2, 256")
    a("s_cbranch_scc1 L_end1")
    a("s_load_dwordx16 %s, s[0:1], 0" % sr(S_P, 16))
    a("s_load_dwordx2 %s, s[0:1], 64" % sr(S_P + 16, 2))
    a("s_load_dwordx2 %s, s[0:1], 96" % sr(S_P + 18, 2))
    if OPT["fuse"]:
        a("s_load_dwordx2 s[86:87], s[0:1], 72")
        a("s_load_dwordx2 %s, s[0:1], 80" % sr(S_OUT, 2))
        a("s_load_dwordx2 %s, s[0:1], 88" % sr(S_D, 2))
        a("s_memrealtime s[90:91]")
    a("v_lshrrev_b32 v1, 6, v0")
    a("v_and_b32 %s, 63, v0" % vr(V_LANE))
    a("v_readfirstlane_b32 %s, v1" % sr(S_WAVE))
    a("s_and_b32 s3, s2, 7")
    a("s_lshr_b32 s45, s2, 3")
    a("s_cmp_ge_u32 s45, 16")
    a("s_cselect_b32 %s, 1, 0" % sr(S_TYPE))
    a("s_mov_b32 %s, %s" % (sr(S_C), f32hex(CEXP)))
    a("s_mov_b32 %s, %s" % (sr(S_T8), f32hex(TLAZY)))
    a("s_lshr_b32 s46, %s, 1" % sr(S_WAVE))
    a("s_and_b32 s47, %s, 1" % sr(S_WAVE))
    a("s_lshl_b32 %s, %s, 15" % (sr(S_RING), sr(S_WAVE)))
    a("s_lshl_b32 %s, %s, 11" % (sr(S_W2K), sr(S_WAVE)))
    a("s_waitcnt lgkmcnt(0)")
    a("s_cmp_eq_u32 %s, 1" % sr(S_TYPE))
    a("s_cbranch_scc1 L_setupA")
    a("s_and_b32 s76, s45, 3")
    a("s_lshl_b32 s77, s3, 2")
    a("s_add_u32 s76, s76, s77")
    a("s_lshr_b32 s77, s45, 2")
    a("s_lshl_b32 s79, s46, 2")
    a("s_add_u32 s79, s79, s77")
    a("s_lshl_b32 s78, s79, 5")
    a("s_add_u32 s78, s78, s76")
    a("s_lshl_b32 s78, s78, 18")
    a("s_add_u32 %s, %s, s78" % (sr(S_K), sr(S_P + 12)))
    a("s_addc_u32 %s, %s, 0" % (sr(S_K + 1), sr(S_P + 13)))
    a("s_add_u32 %s, %s, s78" % (sr(S_V), sr(S_P + 14)))
    a("s_addc_u32 %s, %s, 0" % (sr(S_V + 1), sr(S_P + 15)))
    a("s_mov_b32 %s, %s" % (sr(S_X), sr(S_P + 10)))
    a("s_mov_b32 %s, %s" % (sr(S_X + 1), sr(S_P + 11)))
    a("s_mov_b32 %s, %s" % (sr(S_W), sr(S_P + 16)))
    a("s_mov_b32 %s, %s" % (sr(S_W + 1), sr(S_P + 17)))
    a("s_lshl_b32 %s, s77, 16" % sr(S_XOFF))
    a("s_lshl_b32 s82, s77, 1")
    a("s_and_b32 s83, s45, 3")
    a("s_add_u32 s82, s82, s83")
    a("s_and_b32 s82, s82, %d" % (0 if OPT["norot"] else 7))
    a("s_lshl_b32 %s, s76, 8" % sr(S_WOFF))
    a("s_add_u32 %s, s79, 8" % sr(S_OFLAG))
    a("s_lshl_b32 %s, %s, 5" % (sr(S_OFLAG), sr(S_OFLAG)))
    a("s_add_u32 %s, %s, s76" % (sr(S_OFLAG), sr(S_OFLAG)))
    a("s_branch L_setup_done")
    a.label("L_setupA")
    a("s_sub_u32 s45, s45, 16")
    a("s_lshr_b32 s77, s45, 1")
    a("s_and_b32 s76, s45, 1")
    a("s_lshl_b32 s76, s76, 1")
    a("s_lshl_b32 s78, s3, 2")
    a("s_add_u32 s76, s76, s78")
    a("s_lshl_b32 s78, s77, 3")
    a("s_add_u32 s78, s78, s3")
    a("s_lshl_b32 s78, s78, 18")
    a("s_add_u32 %s, %s, s78" % (sr(S_K), sr(S_P + 2)))
    a("s_addc_u32 %s, %s, 0" % (sr(S_K + 1), sr(S_P + 3)))
    a("s_add_u32 %s, %s, s78" % (sr(S_V), sr(S_P + 4)))
    a("s_addc_u32 %s, %s, 0" % (sr(S_V + 1), sr(S_P + 5)))
    a("s_mov_b32 %s, %s" % (sr(S_X), sr(S_P + 0)))
    a("s_mov_b32 %s, %s" % (sr(S_X + 1), sr(S_P + 1)))
    a("s_mov_b32 %s, %s" % (sr(S_W), sr(S_P + 6)))
    a("s_mov_b32 %s, %s" % (sr(S_W + 1), sr(S_P + 7)))
    a("s_lshl_b32 %s, s77, 16" % sr(S_XOFF))
    a("s_lshl_b32 %s, s76, 8" % sr(S_WOFF))
    a("s_and_b32 s82, s45, 1")
    a("s_lshl_b32 s82, s82, 2")
    a("s_add_u32 s82, s82, s77")
    a("s_and_b32 s82, s82, %d" % (0 if OPT["norot"] else 7))
    a("s_lshl_b32 %s, s77, 5" % sr(S_OFLAG))
    a("s_add_u32 %s, %s, s76" % (sr(S_OFLAG), sr(S_OFLAG)))
    a("s_add_u32 %s, %s, s46" % (sr(S_OFLAG), sr(S_OFLAG)))
    a.label("L_setup_done")
    a("s_lshl_b32 %s, %s, 1" % (sr(S_OFLAG), sr(S_OFLAG)))
    a("s_add_u32 %s, %s, s47" % (sr(S_OFLAG), sr(S_OFLAG)))
    a("s_lshl_b32 %s, %s, 13" % (sr(S_OOFF), sr(S_OFLAG)))
    a("s_lshl_b32 %s, %s, 3" % (sr(S_OFLAG), sr(S_OFLAG)))
    a("s_add_u32 %s, %s, %d" % (sr(S_OFLAG), sr(S_OFLAG), FLAG_O))
    if OPT["fuse"]:
        a("s_mov_b32 s64, s86")
        a("s_mov_b32 s65, s87")
        a("s_mov_b32 %s, 256" % sr(S_D + 2))
        a("s_mov_b32 %s, 0x00020000" % sr(S_D + 3))
        a("s_mov_b32 %s, 1048576" % sr(S_OUT + 2))
        a("s_mov_b32 %s, 0x00020000" % sr(S_OUT + 3))
        a("s_cmp_lg_u32 %s, 0" % sr(S_WAVE))
        a("s_cbranch_scc1 L_nononce")
        a("s_or_b32 s90, s90, 1")
        a("v_mov_b32 v244, s90")
        a("v_mov_b32 v245, s91")
        a("v_mov_b32 v246, 0")
        a("v_mov_b32 v247, 0")
        a("v_mov_b32 v248, 0")
        a("s_mov_b64 exec, 1")
        a("buffer_atomic_cmpswap_x2 v[244:247], v248, %s, 0 offen sc0 sc1" % sr(S_D, 4))
        a("s_mov_b64 exec, -1")
        a.label("L_nononce")
    a("s_mov_b32 %s, 262144" % sr(S_K + 2))
    a("s_mov_b32 %s, 262144" % sr(S_V + 2))
    a("s_mov_b32 %s, 0x00020000" % sr(S_K + 3))
    a("s_mov_b32 %s, 0x00020000" % sr(S_V + 3))
    a("s_mov_b32 %s, 524288" % sr(S_X + 2))
    a("s_mov_b32 %s, 0x00020000" % sr(S_X + 3))
    a("s_mov_b32 %s, 4194304" % sr(S_W + 2))
    a("s_mov_b32 %s, 0x00020000" % sr(S_W + 3))
    a("s_mov_b32 %s, %s" % (sr(S_O), sr(S_P + 18)))
    a("s_mov_b32 %s, %s" % (sr(S_O + 1), sr(S_P + 19)))
    a("s_mov_b32 %s, %d" % (sr(S_O + 2), 25 << 20))
    a("s_mov_b32 %s, 0x00020000" % sr(S_O + 3))
    a("s_lshl_b32 %s, s47, 13" % sr(S_PF))
    stamp_srd(a, sr(S_P + 18), sr(S_P + 19))
    stamp(a, 0)
    fstamp(a)
    L = V_LANE
    a("v_lshlrev_b32 %s, 4, %s" % (vr(V_L16), vr(L)))
    a("v_lshrrev_b32 v40, 4, %s" % vr(L))
    a("v_and_b32 v41, 15, %s" % vr(L))
    a("v_lshlrev_b32 v42, 2, v40")
    a("v_xor_b32 v42, v42, v41")
    a("v_lshlrev_b32 v42, 4, v42")
    a("v_lshl_add_u32 %s, v40, 8, v42" % vr(V_DMA))
    for n in range(1, 4):
        a("v_xor_b32 %s, %d, %s" % (vr(V_DMA + n), 16 * n, vr(V_DMA)))
    a("v_and_b32 v43, 3, v41")
    a("v_lshlrev_b32 v43, 2, v43")
    a("v_lshrrev_b32 v44, 2, v41")
    a("v_or_b32 v43, v43, v44")
    a("v_lshrrev_b32 v44, 5, %s" % vr(L))
    a("v_xor_b32 v45, v44, v43")
    a("v_lshlrev_b32 v45, 4, v45")
    a("v_and_b32 v46, 31, %s" % vr(L))
    a("v_lshl_add_u32 %s, v46, 8, v45" % vr(V_QA0))
    a("v_add_u32 %s, %s, %s" % (vr(V_KAD), sr(S_RING), vr(V_QA0)))
    for k in range(1, 8):
        a("v_xor_b32 %s, %d, %s" % (vr(V_KAD + k), 32 * k, vr(V_KAD)))
    a("v_lshlrev_b32 %s, 13, v46" % vr(V_OVOFF))
    a("v_lshl_add_u32 %s, v44, 4, %s" % (vr(V_OVOFF), vr(V_OVOFF)))
    a("s_lshl_b32 %s, s47, 7" % sr(S_TMP))
    a("v_add_u32 %s, %s, %s" % (vr(V_OVOFF), sr(S_TMP), vr(V_OVOFF)))
    a("v_lshrrev_b32 v45, 2, v41")
    a("v_and_b32 v46, 1, v40")
    a("v_and_b32 v47, 1, v41")
    a("v_lshl_add_u32 v47, v46, 1, v47")
    a("v_xor_b32 v47, v47, v44")
    a("v_lshl_add_u32 v47, v45, 2, v47")
    a("v_lshlrev_b32 v47, 4, v47")
    a("v_bfe_u32 v46, v41, 1, 1")
    a("v_lshl_add_u32 v47, v46, 3, v47")
    a("v_lshl_add_u32 v45, v44, 2, v45")
    a("v_lshl_add_u32 v47, v45, 8, v47")
    a("v_add_u32 %s, %s, v47" % (vr(V_VAD), sr(S_RING)))
    for k in range(1, 8):
        a("v_xor_b32 %s, %d, %s" % (vr(V_VAD + k), 32 * k, vr(V_VAD)))
    VB = 32
    gemm_lds_setup(a, L, 1024, 8192, 47, VB)
    a("s_cmp_eq_u32 %s, 1" % sr(S_TYPE))
    a("s_cbranch_scc1 L_typeA")

    def kv_unit(u, nt):
        srd = S_K if u % 2 == 0 else S_V
        o = []
        for g in range(2):
            o.append("s_add_u32 m0, %s, %d" % (sr(S_RING), u * 8192 + g * 4096))
            o.append("s_add_u32 %s, %s, %d" % (sr(S_TMP), sr(S_PF), (u // 2) * 16384 + g * 4096))
            for n in range(4):
                o.append("buffer_load_dwordx4 %s, %s, %s offen offset:%d%s lds" % (
                    vr(V_DMA + n), sr(srd, 4), sr(S_TMP), n * 1024, " nt" if nt else ""))
        return o

    def qproj(NX, NCG, off, nt):
        done = set()

        shared = NX == 1
        if shared:
            a("s_lshl_b32 %s, s47, 16" % sr(S_RING2))
            a("s_lshl_b32 %s, s46, 12" % sr(S_TMP))
            a("s_add_u32 %s, %s, %s" % (sr(S_RING2), sr(S_RING2), sr(S_TMP)))
            a("s_add_u32 %s, %s, %s" % (sr(S_PF), sr(S_PF), sr(S_TMP)))
            a("s_lshl_b32 %s, s47, 16" % sr(S_TMP))
            a("s_sub_u32 %s, %s, %s" % (sr(S_TMP), sr(S_TMP), sr(S_RING)))
            for k in range(8):
                a("v_add_u32 %s, %s, %s" % (vr(V_KAD + k), sr(S_TMP), vr(V_KAD + k)))
                a("v_add_u32 %s, %s, %s" % (vr(V_VAD + k), sr(S_TMP), vr(V_VAD + k)))

        def extra(c, busy):
            o = []
            if shared:
                if c < 4:
                    t = c // 2
                    o += half_unit(S_K if c % 2 == 0 else S_V, PERM[t] * 16384 + (c % 2) * 8192, t * 16384)
                elif 2 not in done and not any(x in busy for x in (0, 2, 4, 6)):
                    done.add(2)
                    o += half_unit(S_K, PERM[2] * 16384, 2 * 16384) + half_unit(S_V, PERM[2] * 16384 + 8192, 2 * 16384)
                return o
            if c < 4:
                o += kv_unit(c // 2, nt)[6 * (c % 2):6 * (c % 2) + 6]
            else:
                for u, slots in ((2, range(0, 4)), (3, range(4, 8))):
                    if u not in done and not any(x in busy for x in slots) and (u == 2 or 2 in done):
                        done.add(u)
                        o += kv_unit(u, nt)
            return o
        V_FR, V_ACC = 64, 128
        gemm_lds(a, NX, NCG, 262144, 8192, None, 12, off, VB, V_FR, V_ACC, S_X, S_W, S_XOFF, S_WOFF, 46, 46,
                 idle=lambda: init_pass(a), extra=extra)
        a("s_barrier")
        late = extra(8, [])
        for x in late:
            emit(a, x)
        a("s_add_u32 %s, %s, %d" % (sr(S_PF), sr(S_PF), 49152 if shared else 32768))
        fstamp(a)
        stamp(a, 1)
        a("s_lshl_b32 %s, s47, 7" % sr(S_TMP))
        a("v_xor_b32 v29, %s, %s" % (sr(S_TMP), vr(V_QA0)))
        a("s_lshl_b32 %s, s46, 14" % sr(S_TMP))
        a("s_add_u32 %s, %s, %d" % (sr(S_TMP), sr(S_TMP), SCR))
        a("v_add_u32 v29, %s, v29" % sr(S_TMP))
        a("s_nop 7")
        k = 0
        for dbl in range(2):
            for half in range(2):
                x = dbl * 64 + half * 32
                if x:
                    a("v_xor_b32 v30, %d, v29" % x)
                for qbl in range(2):
                    src = V_ACC + (dbl * 2 + qbl) * 16 + half * 8
                    dst = 64 + k * 4
                    k += 1
                    for e in range(8):
                        a("v_mul_f32 %s, %s, %s" % (vr(src + e), sr(S_C), vr(src + e)))
                    for e in range(4):
                        a("v_cvt_pk_bf16_f32 %s, %s, %s" % (vr(dst + e), vr(src + 2 * e), vr(src + 2 * e + 1)))
                    a("ds_write_b128 %s, %s offset:%d" % ("v30" if x else "v29", vr(dst, 4), qbl * 8192))
        a("s_waitcnt lgkmcnt(0)")
        a("s_barrier")
        a("v_add_u32 v29, %s, %s" % (sr(S_TMP), vr(V_QA0)))
        for s in range(8):
            if s:
                a("v_xor_b32 v30, %d, v29" % (32 * s))
            for qb in range(2):
                a("ds_read_b128 %s, %s offset:%d" % (vr(V_Q + (qb * 8 + s) * 4, 4), "v30" if s else "v29", qb * 8192))
            if s == 5:
                a("s_waitcnt lgkmcnt(4)")
        a("s_waitcnt lgkmcnt(0)")
        fstamp(a)
        fdump(a)
        stamp(a, 2)
        if OPT["fuse"]:
            a("s_barrier")
            job_params(a)
            a("v_mov_b32 v246, 0")
            a("buffer_load_dwordx2 %s, v246, %s, 0 offen sc1" % (vr(V_NONCE, 2), sr(S_D, 4)))
        if shared:
            a("s_waitcnt vmcnt(21)")
            a("s_barrier")
            for x in k_reads_s(PERM[0]):
                a(x)
        else:
            a("s_waitcnt vmcnt(24)")
            for x in k_reads(0):
                a(x)

    qproj(2, 1, 4, OPT["nt"] & 1)
    tile_loop(a, "b", OPT["nt"] & 1)
    stamp(a, 5)
    combine2(a, "b", " sc1")
    signal(a, S_OFLAG)
    stamp(a, 6)
    rjob(a, 0, "a")
    stamp(a, 3)
    rjob(a, 1, "b")
    stamp(a, 7)
    a("s_endpgm")
    for par in range(2):
        slow_path(a, 0, V_S, "b%d0" % par)
        slow_path(a, 1, V_S + 16, "b%d1" % par)
    a.label("L_typeA")
    qproj(1, 2, 8, OPT["nt"] & 2)
    tile_loop_shared(a, "a")
    stamp(a, 5)
    combine2(a, "a", " sc1")
    tail_a(a)
    a.label("L_end1")
    a("s_endpgm")
    wo_blocks(a, "a")
    for par in range(4):
        slow_path(a, 0, V_S, "a%d0" % par)
        slow_path(a, 1, V_S + 16, "a%d1" % par)


def kernel2(a):
    a.label("oproj_kernel")
    a("s_cmp_ge_u32 s2, 256")
    a("s_cbranch_scc1 L_end2")
    a("s_load_dwordx2 s[48:49], s[0:1], 32")
    a("s_load_dwordx2 s[50:51], s[0:1], 72")
    a("s_load_dwordx2 s[54:55], s[0:1], 96")
    a("v_lshrrev_b32 v1, 6, v0")
    a("v_and_b32 v0, 63, v0")
    a("v_readfirstlane_b32 %s, v1" % sr(S_WAVE))
    a("s_and_b32 s3, s2, 7")
    a("s_lshr_b32 s45, s2, 3")
    a("s_lshr_b32 s56, s45, 4")
    a("s_bfe_u32 s57, s45, 0x20002")
    a("s_and_b32 s58, s45, 3")
    a("s_lshr_b32 s46, %s, 1" % sr(S_WAVE))
    a("s_and_b32 s47, %s, 1" % sr(S_WAVE))
    a("s_lshl_b32 %s, %s, 11" % (sr(S_W2K), sr(S_WAVE)))
    a("s_waitcnt lgkmcnt(0)")
    a("s_cmp_eq_u32 s56, 0")
    a("s_cselect_b32 %s, s48, s50" % sr(S_W))
    a("s_cselect_b32 %s, s49, s51" % sr(S_W + 1))
    a("s_mov_b32 %s, 4194304" % sr(S_W + 2))
    a("s_mov_b32 %s, 0x00020000" % sr(S_W + 3))
    a("s_mov_b32 %s, s54" % sr(S_X))
    a("s_mov_b32 %s, s55" % sr(S_X + 1))
    a("s_mov_b32 %s, %d" % (sr(S_X + 2), 24 << 20))
    a("s_mov_b32 %s, 0x00020000" % sr(S_X + 3))
    stamp_srd(a, "s54", "s55")
    stamp(a, 0, base=65536)
    a("s_lshl_b32 %s, s56, 22" % sr(S_XOFF))
    a("s_lshl_b32 s59, s57, 20")
    a("s_add_u32 %s, %s, s59" % (sr(S_XOFF), sr(S_XOFF)))
    a("s_lshl_b32 s59, s3, 10")
    a("s_add_u32 %s, %s, s59" % (sr(S_XOFF), sr(S_XOFF)))
    a("s_lshl_b32 %s, s3, 19" % sr(S_WOFF))
    a("s_lshl_b32 s59, s58, 8")
    a("s_add_u32 %s, %s, s59" % (sr(S_WOFF), sr(S_WOFF)))
    a("s_lshl_b32 s82, s57, 1")
    a("s_add_u32 s82, s82, s58")
    a("s_and_b32 s82, s82, %d" % (7 if OPT["rot"] else 0))
    VB = 8
    gemm_lds_setup(a, 0, 8192, 1024, 47, VB)
    V_FR, V_ACC = 32, 96
    gemm_lds(a, 2, 1, 524288, 1024, 0, 20, 0, VB, V_FR, V_ACC, S_X, S_W, S_XOFF, S_WOFF, 46, 46)
    stamp(a, 1, base=65536)
    a("s_lshl_b32 s59, s45, 3")
    a("s_add_u32 s59, s59, s3")
    a("s_lshl_b32 s59, s59, 16")
    a("s_lshl_b32 s60, %s, 14" % sr(S_WAVE))
    a("s_add_u32 s59, s59, s60")
    a("s_add_u32 s59, s59, %d" % (8 << 20))
    a("v_lshlrev_b32 v1, 4, v0")
    a("s_nop 7")
    a("s_nop 3")
    for k in range(16):
        if k and k % 4 == 0:
            a("s_add_u32 s59, s59, 4096")
        a("buffer_store_dwordx4 %s, v1, %s, s59 offen offset:%d" % (vr(V_ACC + 4 * k, 4), sr(S_X, 4), (k % 4) * 1024))
    stamp(a, 2, base=65536)
    a.label("L_end2")
    a("s_endpgm")


def kernel3(a):
    a.label("oreduce_kernel")
    a("s_cmp_ge_u32 s2, 256")
    a("s_cbranch_scc1 L_end3")
    a("s_load_dwordx2 s[4:5], s[0:1], 80")
    a("s_load_dwordx2 s[8:9], s[0:1], 96")
    a("v_lshrrev_b32 v1, 6, v0")
    a("v_and_b32 v0, 63, v0")
    a("v_readfirstlane_b32 s24, v1")
    a("s_lshr_b32 s16, s2, 3")
    a("s_and_b32 s17, s2, 7")
    a("s_lshl_b32 s17, s17, 2")
    a("s_add_u32 s17, s17, s24")
    a("s_lshl_b32 s18, s16, 19")
    a("s_lshl_b32 s19, s17, 11")
    a("s_add_u32 s18, s18, s19")
    a("s_add_u32 s18, s18, %d" % (8 << 20))
    a("v_lshlrev_b32 v1, 4, v0")
    a("s_waitcnt lgkmcnt(0)")
    a("s_mov_b32 s6, 1048576")
    a("s_mov_b32 s7, 0x00020000")
    a("s_mov_b32 s10, %d" % (24 << 20))
    a("s_mov_b32 s11, 0x00020000")
    for k in range(8):
        a("buffer_load_dwordx4 %s, v1, s[8:11], s18 offen" % vr(8 + 8 * k, 4))
        a("buffer_load_dwordx4 %s, v1, s[8:11], s18 offen offset:1024" % vr(12 + 8 * k, 4))
        a("s_add_u32 s18, s18, 65536")
    a("s_bfe_u32 s20, s16, 0x20002")
    a("s_lshl_b32 s20, s20, 7")
    a("s_lshr_b32 s21, s17, 4")
    a("s_lshl_b32 s21, s21, 6")
    a("s_add_u32 s20, s20, s21")
    a("s_bfe_u32 s21, s17, 0x10001")
    a("s_lshl_b32 s21, s21, 5")
    a("s_add_u32 s20, s20, s21")
    a("s_lshl_b32 s20, s20, 11")
    a("s_lshr_b32 s21, s16, 4")
    a("s_lshl_b32 s21, s21, 10")
    a("s_add_u32 s20, s20, s21")
    a("s_and_b32 s21, s16, 3")
    a("s_lshl_b32 s21, s21, 8")
    a("s_add_u32 s20, s20, s21")
    a("s_bfe_u32 s21, s17, 0x10003")
    a("s_lshl_b32 s21, s21, 7")
    a("s_add_u32 s20, s20, s21")
    a("s_bfe_u32 s21, s17, 0x10002")
    a("s_lshl_b32 s21, s21, 6")
    a("s_add_u32 s20, s20, s21")
    a("s_and_b32 s21, s17, 1")
    a("s_lshl_b32 s21, s21, 5")
    a("s_add_u32 s20, s20, s21")
    a("v_and_b32 v2, 31, v0")
    a("v_lshlrev_b32 v2, 11, v2")
    a("v_lshrrev_b32 v3, 5, v0")
    a("v_lshl_add_u32 v2, v3, 4, v2")
    for k in range(1, 8):
        a("s_waitcnt vmcnt(%d)" % (14 - 2 * k))
        for e in range(8):
            a("v_add_f32 %s, %s, %s" % (vr(8 + e), vr(8 + e), vr(8 + 8 * k + e)))
    for e in range(4):
        a("v_cvt_pk_bf16_f32 %s, %s, %s" % (vr(4 + e), vr(8 + 2 * e), vr(9 + 2 * e)))
    a("buffer_store_dwordx4 v[4:7], v2, s[4:7], s20 offen")
    a.label("L_end3")
    a("s_endpgm")


def descriptor(name, vgpr, accum, sgpr=102):
    return """.amdhsa_kernel %s
  .amdhsa_next_free_vgpr %d
  .amdhsa_next_free_sgpr %d
  .amdhsa_accum_offset %d
  .amdhsa_group_segment_fixed_size 0
  .amdhsa_kernarg_size 104
  .amdhsa_user_sgpr_count 2
  .amdhsa_user_sgpr_kernarg_segment_ptr 1
  .amdhsa_system_sgpr_workgroup_id_x 1
.end_amdhsa_kernel
""" % (name, vgpr, sgpr, accum)


def main():
    out = HEADER
    if OPT["fuse"]:
        out += "; @launch grid=(256,1,1) block=(256,1,1) lds=%d\n" % LDS1
        ks = ((K1NAME, kernel1),)
    else:
        out += "; @launch kernel=attn_kernel grid=(256,1,1) block=(256,1,1) lds=%d\n" % LDS1
        if OPT["k2"]:
            out += "; @launch kernel=oproj_kernel grid=(256,1,1) block=(256,1,1) lds=163840\n"
            out += "; @launch kernel=oreduce_kernel grid=(256,1,1) block=(256,1,1) lds=0\n"
        ks = (("attn_kernel", kernel1), ("oproj_kernel", kernel2), ("oreduce_kernel", kernel3))
    out += '.amdgcn_target "amdgcn-amd-amdhsa--gfx950"\n.text\n'
    for nm, fn in ks:
        a = Asm()
        out += ".globl %s\n.p2align 8\n.type %s,@function\n" % (nm, nm)
        fn(a)
        out += a.text()
    out += '.section .rodata,"a"\n.p2align 6\n'
    out += descriptor(K1NAME, 512, 256)
    if not OPT["fuse"]:
        out += ".p2align 6\n"
        out += descriptor("oproj_kernel", 160, 160)
        out += ".p2align 6\n"
        out += descriptor("oreduce_kernel", 72, 72, 32)
    open(sys.argv[1], "w").write(out)


K1NAME = (NAME + "_kernel") if OPT["fuse"] else "attn_kernel"
main()
```

```python
import math, sys

NAME = "concat_heads__gqa_block_cached__mha_block_cached__near_ridge"

HEADER = """; Kernarg layout for this problem (104 bytes, ptrs only, base s[0:1]):
"""

OPT = dict(nt=0, nocompute=0, k2=1, stamp=0, qdma=1, rot=1, xort=2, rv=3, qreg=1, kvlate=0, norot=0, fine=0, fuse=1, spin=4000000, pre=12, res=2, touch=1)
for arg in sys.argv[2:]:
    k, v = arg.split("=")
    OPT[k] = int(v)


def f32hex(x):
    import struct
    return "0x%08x" % struct.unpack("<I", struct.pack("<f", x))[0]


class Asm:
    def __init__(self):
        self.lines = []
        self.vm = 0
        self.uid = 0

    def __call__(self, s):
        self.lines.append("    " + s)

    def label(self, l):
        self.lines.append(l + ":")

    def c(self, s):
        self.lines.append("    ; " + s)

    def vmem(self, s):
        self(s)
        self.vm += 1
        return self.vm - 1

    def wait_vm(self, idx):
        n = self.vm - idx - 1
        assert 0 <= n
        n = min(n, 63)
        self("s_waitcnt vmcnt(%d)" % n)

    def text(self):
        return "\n".join(self.lines) + "\n"


def vr(b, n=1):
    return "v%d" % b if n == 1 else "v[%d:%d]" % (b, b + n - 1)


def ar(b, n=1):
    return "a%d" % b if n == 1 else "a[%d:%d]" % (b, b + n - 1)


def sr(b, n=1):
    return "s%d" % b if n == 1 else "s[%d:%d]" % (b, b + n - 1)


def interleave(a, mfmas, fillers, lead=0):
    n = len(mfmas)
    gaps = n - lead
    done = 0
    for i, m in enumerate(mfmas):
        a(m)
        if i >= lead and gaps > 0:
            want = (len(fillers) * (i - lead + 1) + gaps - 1) // gaps
            while done < want:
                emit(a, fillers[done])
                done += 1
    while done < len(fillers):
        emit(a, fillers[done])
        done += 1


def emit(a, f):
    if callable(f):
        f()
    elif f.startswith("buffer_"):
        a.vmem(f)
    elif "\n" in f:
        for x in f.split("\n"):
            emit(a, x)
    elif f.endswith(":"):
        a.label(f[:-1])
    else:
        a(f)


SCALE = 128 ** -0.5
CEXP = SCALE * math.log2(math.e)
TLAZY = 8.0
RING = 32768
SCR = 131072
STG = 65536
LDS1 = 163840
ITEM_JUMP = 4 * 32 * 262144 - 262144
SEL_LO = 0x05040100
SEL_HI = 0x07060302

S_K, S_V, S_X, S_W, S_O = 4, 8, 12, 16, 20
S_WAVE, S_TYPE, S_PF, S_T, S_RING = 24, 25, 26, 27, 28
S_XOFF, S_WOFF, S_C, S_SELLO, S_SELHI = 29, 30, 31, 32, 33
S_OOFF0, S_OOFF1, S_PASS, S_TMP, S_TMP2, S_M0K, S_M0V, S_FIRST = 34, 35, 36, 37, 38, 39, 40, 41
S_T8, S_JUMP, S_OOFF = 42, 43, 44
S_W2K, S_TMP3 = 80, 81
S_PFV, S_TK, S_TV, S_XORT = 85, 86, 87, 88
S_P = 48

V_LANE, V_KA, V_VA, V_TA, V_TB = 0, 1, 2, 3, 4
V_DMA = 5
V_MC = 9
V_L = 13
V_TMAX = 17
V_T0 = 18
V_OVOFF = 26
V_L16 = 27
V_QA0 = 28
V_VW = 31
V_VF = 32
V_KF = 64
V_S = 96
V_Q = 128
V_CM = 192
V_KAD = 224
V_VAD = 232
V_ONES = 240
A_L = 128
S_THR = 41
S_RING2 = 39
S_D = 68
S_OUT = 72
S_OFLAG = 89
V_NONCE = 244
FLAG_O = 24 << 20
FLAG_P = (24 << 20) + 8192


def gemm_lds_setup(a, L, XS, WS, s_dh, vb):
    vx0, vx1, vw0, vw1, px, pw, t0, t1 = vb, vb + 1, vb + 2, vb + 3, vb + 4, vb + 8, vb + 12, vb + 13
    a("v_lshrrev_b32 %s, 4, %s" % (vr(t0), vr(L)))
    a("v_and_b32 %s, 7, %s" % (vr(t1), vr(L)))
    a("v_xor_b32 %s, %s, %s" % (vr(t1), vr(t1), vr(t0)))
    a("v_lshlrev_b32 %s, 4, %s" % (vr(t1), vr(t1)))
    a("v_lshrrev_b32 %s, 3, %s" % (vr(t0), vr(L)))
    a("s_lshl_b32 %s, %s, 4" % (sr(S_TMP), sr(S_WAVE)))
    a("v_add_u32 %s, %s, %s" % (vr(t0), sr(S_TMP), vr(t0)))
    a("s_mov_b32 %s, %d" % (sr(S_TMP), XS))
    a("v_mul_lo_u32 %s, %s, %s" % (vr(t0), vr(t0), sr(S_TMP)))
    a("v_add_u32 %s, %s, %s" % (vr(vx0), vr(t0), vr(t1)))
    a("v_xor_b32 %s, 64, %s" % (vr(t1), vr(t1)))
    a("v_add_u32 %s, %s, %s" % (vr(vx1), vr(t0), vr(t1)))
    a("v_add_u32 %s, %d, %s" % (vr(vx1), 8 * XS - 1024, vr(vx1)))
    a("v_lshrrev_b32 %s, 4, %s" % (vr(t0), vr(L)))
    a("v_and_b32 %s, 15, %s" % (vr(t1), vr(L)))
    a("v_lshlrev_b32 %s, 2, %s" % (vr(vw0), vr(t0)))
    a("v_xor_b32 %s, %s, %s" % (vr(t1), vr(t1), vr(vw0)))
    a("s_lshl_b32 %s, %s, 1" % (sr(S_TMP), sr(S_WAVE)))
    a("s_and_b32 %s, %s, 3" % (sr(S_TMP), sr(S_TMP)))
    a("v_xor_b32 %s, %s, %s" % (vr(t1), sr(S_TMP), vr(t1)))
    a("v_lshlrev_b32 %s, 4, %s" % (vr(t1), vr(t1)))
    a("s_lshl_b32 %s, %s, 3" % (sr(S_TMP), sr(S_WAVE)))
    a("v_add_u32 %s, %s, %s" % (vr(t0), sr(S_TMP), vr(t0)))
    a("s_mov_b32 %s, %d" % (sr(S_TMP), WS))
    a("v_mul_lo_u32 %s, %s, %s" % (vr(t0), vr(t0), sr(S_TMP)))
    a("v_add_u32 %s, %s, %s" % (vr(vw0), vr(t0), vr(t1)))
    a("v_xor_b32 %s, 16, %s" % (vr(t1), vr(t1)))
    a("v_add_u32 %s, %s, %s" % (vr(vw1), vr(t0), vr(t1)))
    a("v_add_u32 %s, %d, %s" % (vr(vw1), 4 * WS - 1024, vr(vw1)))
    a("v_bfe_u32 %s, %s, 1, 3" % (vr(t0), vr(L)))
    a("v_lshrrev_b32 %s, 5, %s" % (vr(t1), vr(L)))
    a("v_xor_b32 %s, %s, %s" % (vr(t0), vr(t0), vr(t1)))
    a("v_lshlrev_b32 %s, 4, %s" % (vr(t0), vr(t0)))
    a("v_and_b32 %s, 31, %s" % (vr(t1), vr(L)))
    a("v_lshl_add_u32 %s, %s, 7, %s" % (vr(px), vr(t1), vr(t0)))
    for k in range(1, 4):
        a("v_xor_b32 %s, %d, %s" % (vr(px + k), 32 * k, vr(px)))
    a("v_bfe_u32 %s, %s, 4, 1" % (vr(t0), vr(L)))
    a("v_and_b32 %s, 1, %s" % (vr(t1), vr(L)))
    a("v_lshl_add_u32 %s, %s, 1, %s" % (vr(t0), vr(t0), vr(t1)))
    a("v_lshrrev_b32 %s, 5, %s" % (vr(t1), vr(L)))
    a("v_lshlrev_b32 %s, 1, %s" % (vr(pw + 1), vr(t1)))
    a("v_xor_b32 %s, %s, %s" % (vr(t0), vr(t0), vr(pw + 1)))
    a("v_bfe_u32 %s, %s, 2, 2" % (vr(pw + 1), vr(L)))
    a("v_lshl_add_u32 %s, %s, 2, %s" % (vr(t0), vr(pw + 1), vr(t0)))
    a("v_lshlrev_b32 %s, 4, %s" % (vr(t0), vr(t0)))
    a("v_lshl_add_u32 %s, %s, 3, %s" % (vr(t1), vr(t1), vr(pw + 1)))
    a("v_lshl_add_u32 %s, %s, 8, %s" % (vr(t0), vr(t1), vr(t0)))
    a("v_bfe_u32 %s, %s, 1, 1" % (vr(t1), vr(L)))
    a("v_lshl_add_u32 %s, %s, 3, %s" % (vr(t0), vr(t1), vr(t0)))
    a("s_lshl_b32 %s, %s, 7" % (sr(S_TMP), sr(s_dh)))
    a("v_xor_b32 %s, %s, %s" % (vr(pw), sr(S_TMP), vr(t0)))
    a("v_xor_b32 %s, 16, %s" % (vr(pw + 1), vr(pw)))
    a("v_xor_b32 %s, 64, %s" % (vr(pw + 2), vr(pw)))
    a("v_xor_b32 %s, 80, %s" % (vr(pw + 3), vr(pw)))


def blk_addr(b):
    return (b & 3) * 32768 + (b >> 2) * 8192 if b < 16 else SCR + (b - 16) * 8192


def plan_staging(NU, kv_needs, pre, reserve):
    total = 8 * NU
    order = []
    for need in kv_needs:
        order += [b for b in need if b not in order]
    order += [b for b in range(20) if b not in order]
    prio = {b: i for i, b in enumerate(order)}
    ub, ua = {}, {}
    for u in range(min(20, total)):
        ub[u] = order[u]
        ua[u] = -1 if u < pre else (u - pre) // (2 * NU)
    nxt = min(20, total)
    free = set()
    kv_at = {}
    kvi = 0
    for c in range(1, 9):
        free |= {ub[u] for u in range((c - 1) * NU, c * NU)}
        while True:
            if kvi < len(kv_needs) and set(kv_needs[kvi]) <= free and (kvi < reserve or nxt >= total):
                free -= set(kv_needs[kvi])
                kv_at[kvi] = c
                kvi += 1
                continue
            break
        held = set()
        for k in range(kvi, min(reserve, len(kv_needs))):
            held |= set(kv_needs[k])
        cand = sorted(free - held, key=lambda b: -prio[b])
        while nxt < total and cand and c < 8:
            b = cand.pop(0)
            free.discard(b)
            ub[nxt], ua[nxt] = b, c
            nxt += 1
        while kvi < len(kv_needs) and nxt >= total and set(kv_needs[kvi]) <= free:
            free -= set(kv_needs[kvi])
            kv_at[kvi] = c
            kvi += 1
    assert nxt >= total and kvi == len(kv_needs), (nxt, kvi)
    for u in range(total):
        assert ua[u] < u // NU, (u, ua[u])
    return ub, ua, kv_at


def gemm_lds(a, NX, NCG, XUS, WS, vb, v_fr, v_acc, srd_x, srd_w, s_xoff, s_woff, s_xsel, s_wsel,
             kv_needs, kv_code, idle=None, xflags=""):
    vx0, vx1, vw0, vw1, px, pw, t0, t1 = vb, vb + 1, vb + 2, vb + 3, vb + 4, vb + 8, vb + 12, vb + 13
    NU = NX + 2 * NCG
    NCH = 8
    total = NU * NCH
    ub, ua, kv_at = plan_staging(NU, kv_needs, OPT["pre"] if NU == 4 else OPT["pre"] + 3, OPT["res"] * (1 if NU == 4 else 2))
    slot_addr = lambda u: blk_addr(ub[u])
    lastop = {}

    def issue(u):
        c, k = divmod(u, NU)
        o = []
        if k == 0:
            o += ["s_lshl_b32 s83, s82, 7", "s_add_u32 s83, s83, %s" % sr(s_xoff), "s_mul_i32 s84, s82, %d" % (64 * WS),
                  "s_add_u32 s84, s84, %s" % sr(s_woff), "s_add_u32 s82, s82, 1", "s_and_b32 s82, s82, 7"]
        o.append("s_add_u32 m0, %s, %d" % (sr(S_W2K), slot_addr(u)))
        if k < NX:
            o.append("s_add_u32 %s, s83, %d" % (sr(S_TMP), k * XUS))
            v0_, v1_, srd, fl = vx0, vx1, srd_x, xflags
        else:
            cg, half = divmod(k - NX, 2)
            o.append("s_add_u32 %s, s84, %d" % (sr(S_TMP), (half * 32) * WS + cg * 256))
            v0_, v1_, srd, fl = vw0, vw1, srd_w, ""
        o.append("buffer_load_dwordx4 %s, %s, %s offen%s lds" % (vr(v0_), sr(srd, 4), sr(S_TMP), fl))
        o.append("buffer_load_dwordx4 %s, %s, %s offen offset:1024%s lds" % (vr(v1_), sr(srd, 4), sr(S_TMP), fl))
        o.append(lambda c=c: lastop.__setitem__(c, a.vm - 1))
        return o

    fstamp(a)
    for u in range(total):
        if ua[u] == -1:
            for x in issue(u):
                emit(a, x)
    if idle:
        idle()
    XF, WF = v_fr, v_fr + 32
    fstamp(a)
    for c in range(NCH):
        a.wait_vm(lastop[c])
        fstamp(a)
        a("s_barrier")
        fill = []
        for k in range(len(kv_needs)):
            if kv_at[k] == c:
                fill += kv_code(k)
        for u in range(total):
            if ua[u] == c:
                fill += issue(u)
        u0 = c * NU
        if NX == 2:
            a("s_mov_b32 %s, %d" % (sr(S_TMP2), slot_addr(u0)))
            a("s_cmp_eq_u32 %s, 0" % sr(s_xsel))
            a("s_cselect_b32 %s, %s, %d" % (sr(S_TMP2), sr(S_TMP2), slot_addr(u0 + 1)))
            xb = sr(S_TMP2)
        else:
            xb = "%d" % slot_addr(u0)
        reads = [[], []]
        for hf in range(2):
            rd = reads[hf]
            if NCG == 2:
                rd.append("s_mov_b32 %s, %d" % (sr(S_TMP3), slot_addr(u0 + NX + hf)))
                rd.append("s_cmp_eq_u32 %s, 0" % sr(s_wsel))
                rd.append("s_cselect_b32 %s, %s, %d" % (sr(S_TMP3), sr(S_TMP3), slot_addr(u0 + NX + 2 + hf)))
                wb = sr(S_TMP3)
            else:
                wb = "%d" % slot_addr(u0 + NX + hf)
            for k2 in range(2):
                s_ = hf * 2 + k2
                rd.append("v_add_u32 %s, %s, %s" % (vr(t0), xb, vr(px + s_)))
                for qbl in range(2):
                    rd.append("ds_read_b128 %s, %s offset:%d" % (vr(XF + (qbl * 4 + s_) * 4, 4), vr(t0), qbl * 4096))
            for dbl in range(2):
                for hr in range(2):
                    tt = t1 if hr else t0
                    rd.append("v_add_u32 %s, %s, %s" % (vr(tt), wb, vr(pw + dbl * 2 + hr)))
                    for k2 in range(2):
                        s_ = hf * 2 + k2
                        rd.append("ds_read_b64_tr_b16 %s, %s offset:%d" % (vr(WF + (dbl * 4 + s_) * 4 + 2 * hr, 2), vr(tt), k2 * 4096 + hr * 1024))
        for x in reads[0]:
            a(x)
        h = len(fill) // 3
        for x in fill[:h]:
            emit(a, x)
        a("s_waitcnt lgkmcnt(0)")
        interleave(a, mf(0, c, XF, WF, v_acc), reads[1])
        a("s_waitcnt lgkmcnt(0)")
        interleave(a, mf(1, c, XF, WF, v_acc), fill[h:])
    late = []
    for k in range(len(kv_needs)):
        if kv_at[k] == 8:
            late += kv_code(k)
    return late


def mf(hf, c, XF, WF, v_acc):
    out = []
    for k2 in range(2):
        s_ = hf * 2 + k2
        for dbl in range(2):
            for qbl in range(2):
                acc = vr(v_acc + (dbl * 2 + qbl) * 16, 16)
                out.append("v_mfma_f32_32x32x16_bf16 %s, %s, %s, %s" % (acc, vr(WF + (dbl * 4 + s_) * 4, 4), vr(XF + (qbl * 4 + s_) * 4, 4),
                                                                       "0" if (c == 0 and s_ == 0) else acc))
    return out


def dma_unit(a, srd, s_m0_base, slot_imm, s_goff, lst=None):
    out = []
    nt = " nt" if slot_imm else ""
    for g in range(2):
        if g == 0:
            out.append("s_mov_b32 m0, %s" % sr(s_m0_base))
            out.append("s_mov_b32 %s, %s" % (sr(S_TMP), sr(s_goff)))
        else:
            out.append("s_add_u32 m0, %s, 4096" % sr(s_m0_base))
            out.append("s_add_u32 %s, %s, 4096" % (sr(S_TMP), sr(s_goff)))
        for n in range(4):
            out.append("buffer_load_dwordx4 %s, %s, %s offen offset:%d%s lds" % (vr(V_DMA + n), sr(srd, 4), sr(S_TMP), n * 1024, nt))
    return out


def softmax_ops(j, sb, tag):
    f = []
    t0, t1, t2, t3, t4 = V_T0, V_T0 + 1, V_T0 + 2, V_T0 + 3, V_T0 + 4
    s = lambda i: vr(sb + i)
    f.append("v_max3_f32 %s, %s, %s, %s" % (vr(t0), s(0), s(1), s(2)))
    f.append("v_max3_f32 %s, %s, %s, %s" % (vr(t1), s(3), s(4), s(5)))
    f.append("v_max3_f32 %s, %s, %s, %s" % (vr(t2), s(6), s(7), s(8)))
    f.append("v_max3_f32 %s, %s, %s, %s" % (vr(t3), s(9), s(10), s(11)))
    f.append("v_max3_f32 %s, %s, %s, %s" % (vr(t4), s(12), s(13), s(14)))
    f.append("v_max3_f32 %s, %s, %s, %s" % (vr(t0), vr(t0), vr(t1), s(15)))
    f.append("v_max3_f32 %s, %s, %s, %s" % (vr(t2), vr(t2), vr(t3), vr(t4)))
    f.append("v_max_f32 %s, %s, %s" % (vr(V_TMAX), vr(t0), vr(t2)))
    f.append("v_cmp_lt_f32 vcc, %s, %s" % (sr(S_THR), vr(V_TMAX)))
    f.append("s_cbranch_vccnz L_slow_%s\nL_back_%s:" % (tag, tag))
    for i in range(16):
        f.append("v_exp_f32 %s, %s" % (s(i), s(i)))
        if i >= 3 and i % 2 == 1:
            p = (i - 3) // 2
            f.append("v_cvt_pk_bf16_f32 %s, %s, %s" % (s(p), s(2 * p), s(2 * p + 1)))
    f.append("s_nop 0")
    f.append("v_cvt_pk_bf16_f32 %s, %s, %s" % (s(7), s(14), s(15)))
    return f


def slow_path(a, j, sb, tag):
    t0, t1, t2 = V_T0, V_T0 + 1, V_T0 + 2
    a.label("L_slow_%s" % tag)
    a("v_mov_b32 %s, %s" % (vr(t0), vr(V_TMAX)))
    a("v_mov_b32 %s, %s" % (vr(t1), vr(V_TMAX)))
    a("s_nop 1")
    a("v_permlane32_swap_b32 %s, %s" % (vr(t0), vr(t1)))
    a("s_nop 1")
    a("v_max_f32 %s, %s, %s" % (vr(t0), vr(t0), vr(t1)))
    a("s_cmp_eq_u32 %s, 0" % sr(S_T))
    a("s_cbranch_scc1 L_slow2_%s" % tag)
    a("v_max_f32 %s, 0, %s" % (vr(t0), vr(t0)))
    a("v_sub_f32 %s, 0, %s" % (vr(t1), vr(t0)))
    a("v_exp_f32 %s, %s" % (vr(t1), vr(t1)))
    a("s_nop 7")
    a("s_nop 7")
    regs = list(range(j * 64, j * 64 + 64)) + list(range(A_L + 16 * j, A_L + 16 * j + 4))
    for r in range(0, len(regs), 4):
        for q in range(4):
            a("v_accvgpr_read_b32 %s, %s" % (vr(t2 + q), ar(regs[r + q])))
        for q in range(4):
            a("v_mul_f32 %s, %s, %s" % (vr(t2 + q), vr(t2 + q), vr(t1)))
        for q in range(4):
            a("v_accvgpr_write_b32 %s, %s" % (ar(regs[r + q]), vr(t2 + q)))
    a.label("L_slow2_%s" % tag)
    for i in range(16):
        a("v_sub_f32 %s, %s, %s" % (vr(sb + i), vr(sb + i), vr(t0)))
    for i in range(16):
        a("v_sub_f32 %s, %s, %s" % (vr(V_CM + 16 * j + i), vr(V_CM + 16 * j + i), vr(t0)))
    a("s_nop 1")
    a("s_branch L_back_%s" % tag)


def qk_mfmas(j, sb):
    out = []
    for s in range(8):
        d = vr(sb, 16)
        out.append("v_mfma_f32_32x32x16_bf16 %s, %s, %s, %s" % (d, vr(V_KF + 4 * s, 4), vr(V_Q + (j * 8 + s) * 4, 4), vr(V_CM + 16 * j, 16) if s == 0 else d))
    return out


def pv_mfmas(j, sb):
    out = []
    for ks in range(2):
        for db in range(4):
            o = ar(j * 64 + db * 16, 16)
            out.append("v_mfma_f32_32x32x16_bf16 %s, %s, %s, %s" % (o, vr(V_VF + (db * 2 + ks) * 4, 4), vr(sb + 4 * ks, 4), o))
        l = ar(A_L + 16 * j, 16)
        out.append("v_mfma_f32_32x32x16_bf16 %s, %s, %s, %s" % (l, vr(V_ONES, 4), vr(sb + 4 * ks, 4), l))
    return out


def stamp(a, idx, srd=None, base=0):
    if not OPT["stamp"]:
        return
    a("s_memrealtime s[90:91]")
    a("s_memtime s[94:95]")
    a("s_waitcnt lgkmcnt(0)")
    a("s_lshl_b32 s92, s2, 2")
    a("s_add_u32 s92, s92, %s" % sr(S_WAVE))
    a("s_lshl_b32 s92, s92, 6")
    a("s_add_u32 s92, s92, %d" % ((16 << 20) + base + idx * 4))
    a("v_mov_b32 v25, s90")
    a("v_mov_b32 v24, 0")
    a("buffer_store_dword v25, v24, s[96:99], s92 offen")
    a("v_mov_b32 v23, s94")
    a("buffer_store_dword v23, v24, s[96:99], s92 offen offset:32")
    a.vm += 2


FINE = [0]
def fstamp(a):
    if not OPT["fine"]:
        return
    a("s_memtime s[90:91]")
    a("s_waitcnt lgkmcnt(0)")
    a("v_writelane_b32 v250, s90, %d" % FINE[0])
    FINE[0] += 1


def fdump(a):
    if not OPT["fine"]:
        return
    a("s_lshl_b32 s92, s2, 2")
    a("s_add_u32 s92, s92, %s" % sr(S_WAVE))
    a("s_lshl_b32 s92, s92, 8")
    a("s_add_u32 s92, s92, %d" % (29 << 20))
    a("v_lshlrev_b32 v251, 2, v0")
    a("buffer_store_dword v250, v251, s[96:99], s92 offen")
    a.vm += 1
    FINE[0] = 1


def stamp_srd(a, lo, hi):
    if not OPT["stamp"]:
        return
    a("s_mov_b32 s96, %s" % lo)
    a("s_mov_b32 s97, %s" % hi)
    a("s_mov_b32 s98, %d" % (32 << 20))
    a("s_mov_b32 s99, 0x00020000")


A_WO = 160
V_W0 = 252


def job_params(a):
    a("s_lshr_b32 s45, s2, 3")
    a("s_bfe_u32 s77, s45, 0x20002")
    a("s_and_b32 s78, s45, 3")
    a("s_mov_b32 %s, %s" % (sr(S_W), sr(S_P + 8)))
    a("s_mov_b32 %s, %s" % (sr(S_W + 1), sr(S_P + 9)))
    a("s_lshl_b32 %s, s3, 19" % sr(S_WOFF))
    a("s_lshl_b32 s59, s78, 8")
    a("s_add_u32 %s, %s, s59" % (sr(S_WOFF), sr(S_WOFF)))
    t0, t1 = 246, 247
    a("v_lshrrev_b32 %s, 4, %s" % (vr(t0), vr(V_LANE)))
    a("v_and_b32 %s, 15, %s" % (vr(t1), vr(V_LANE)))
    a("v_lshlrev_b32 %s, 2, %s" % (vr(V_W0), vr(t0)))
    a("v_xor_b32 %s, %s, %s" % (vr(t1), vr(t1), vr(V_W0)))
    a("s_lshl_b32 %s, %s, 1" % (sr(S_TMP), sr(S_WAVE)))
    a("s_and_b32 %s, %s, 3" % (sr(S_TMP), sr(S_TMP)))
    a("v_xor_b32 %s, %s, %s" % (vr(t1), sr(S_TMP), vr(t1)))
    a("v_lshlrev_b32 %s, 4, %s" % (vr(t1), vr(t1)))
    a("s_lshl_b32 %s, %s, 3" % (sr(S_TMP), sr(S_WAVE)))
    a("v_add_u32 %s, %s, %s" % (vr(t0), sr(S_TMP), vr(t0)))
    a("v_lshlrev_b32 %s, 10, %s" % (vr(t0), vr(t0)))
    a("v_add_u32 %s, %s, %s" % (vr(V_W0), vr(t0), vr(t1)))
    a("v_xor_b32 %s, 16, %s" % (vr(t1), vr(t1)))
    a("v_add_u32 %s, %s, %s" % (vr(V_W0 + 1), vr(t0), vr(t1)))
    a("v_add_u32 %s, %d, %s" % (vr(V_W0 + 1), 4 * 1024 - 1024, vr(V_W0 + 1)))


def wo_blocks(a, tag):
    for b in range(4):
        a.label("L_wo%d_%s" % (b, tag))
        for u in range(4 * b, 4 * b + 4):
            a("s_add_u32 %s, %s, %d" % (sr(S_TMP), sr(S_WOFF), u * 32 * 1024))
            if u < 12:
                a("buffer_load_dwordx4 %s, %s, %s, %s offen" % (ar(A_WO + 8 * u, 4), vr(V_W0), sr(S_W, 4), sr(S_TMP)))
                a("buffer_load_dwordx4 %s, %s, %s, %s offen offset:1024" % (ar(A_WO + 8 * u + 4, 4), vr(V_W0 + 1), sr(S_W, 4), sr(S_TMP)))
            else:
                a("s_add_u32 m0, %s, %d" % (sr(S_W2K), SCR + (u - 12) * 8192))
                a("s_nop 0")
                a("buffer_load_dwordx4 %s, %s, %s offen lds" % (vr(V_W0), sr(S_W, 4), sr(S_TMP)))
                a("buffer_load_dwordx4 %s, %s, %s offen offset:1024 lds" % (vr(V_W0 + 1), sr(S_W, 4), sr(S_TMP)))
        a("s_branch L_woback%d_%s" % (b & 1, tag))


def dma_list(srd, lds_off, nt):
    out = []
    for g in range(2):
        out.append("s_add_u32 m0, %s, %d" % (sr(S_RING), lds_off + g * 4096))
        if g == 0:
            out.append("s_nop 0")
            so = S_PF
        else:
            out.append("s_add_u32 %s, %s, 4096" % (sr(S_TMP), sr(S_PF)))
            so = S_TMP
        for n in range(4):
            out.append("buffer_load_dwordx4 %s, %s, %s offen offset:%d%s lds" % (vr(V_DMA + n), sr(srd, 4), sr(so), n * 1024, " nt" if nt else ""))
    return out


def k_reads(par):
    return ["ds_read_b128 %s, %s offset:%d" % (vr(V_KF + 4 * s, 4), vr(V_KAD + s), par * 16384) for s in range(8)]


def tile_loop(a, tag, nt):
    a("s_mov_b32 %s, 0" % sr(S_T))
    a.label("L_tile_%s" % tag)
    SB = lambda j: V_S + 16 * (j & 1)
    for par in range(2):
        tg = "%s%d" % (tag, par)
        vreads = []
        for db in range(4):
            for hr in range(2):
                for ks in range(2):
                    vreads.append("ds_read_b64_tr_b16 %s, %s offset:%d" % (
                        vr(V_VF + (db * 2 + ks) * 4 + 2 * hr, 2), vr(V_VAD + db * 2 + hr), 8192 + par * 16384 + ks * 4096 + hr * 2048))
        kd = dma_list(S_K, par * 16384, nt)
        vd = dma_list(S_V, 8192 + par * 16384, nt)
        a("s_waitcnt vmcnt(16) lgkmcnt(0)")
        fa = []
        for i in range(8):
            fa += vreads[2 * i:2 * i + 2]
            if i == 3:
                fa.append("s_waitcnt lgkmcnt(4)")
        interleave(a, qk_mfmas(0, SB(0)), fa[:9] + kd[:3] + fa[9:] + kd[3:6])
        interleave(a, qk_mfmas(1, SB(1)), kd[6:] + ["s_nop 3"] + softmax_ops(0, SB(0), tg + "0"))
        a("s_waitcnt lgkmcnt(0)")
        a("s_nop 0")
        sm1 = softmax_ops(1, SB(1), tg + "1")
        interleave(a, pv_mfmas(0, SB(0)), vd[:6] + ["s_nop 3"] + sm1[:10] + vd[6:9] + sm1[10:22] + vd[9:] + sm1[22:])
        a("s_nop 1")
        tail = ["s_add_u32 %s, %s, 16384" % (sr(S_PF), sr(S_PF)),
                "s_add_u32 %s, %s, 1" % (sr(S_T), sr(S_T)),
                "s_mov_b32 %s, %s" % (sr(S_THR), sr(S_T8)),
                "s_waitcnt vmcnt(24)"] + k_reads(1 - par)
        interleave(a, pv_mfmas(1, SB(1)), tail)
    a("s_cmp_lt_u32 %s, 16" % sr(S_T))
    a("s_cbranch_scc1 L_tile_%s" % tag)
    a("s_waitcnt lgkmcnt(0)")


PERM = [0, 2, 1, 3]


def half_unit(srd, lds_off, goff_imm=None):
    out = ["s_add_u32 m0, %s, %d" % (sr(S_RING2), lds_off)]
    if goff_imm is None:
        out.append("s_nop 0")
        so = S_PF
    else:
        out.append("s_add_u32 %s, %s, %d" % (sr(S_TMP), sr(S_PF), goff_imm))
        so = S_TMP
    for n in range(4):
        out.append("buffer_load_dwordx4 %s, %s, %s offen offset:%d lds" % (vr(V_DMA + n), sr(srd, 4), sr(so), n * 1024))
    return out


def k_reads_s(slot):
    return ["ds_read_b128 %s, %s offset:%d" % (vr(V_KF + 4 * s, 4), vr(V_KAD + s), slot * 16384) for s in range(8)]


def tile_loop_shared(a, tag):
    a("s_mov_b32 %s, 0" % sr(S_T))
    a.label("L_tile_%s" % tag)
    for b in range(4):
        pass
    SB = lambda j: V_S + 16 * (j & 1)
    for u in range(4):
        tg = "%s%d" % (tag, u)
        if u % 2 == 0:
            for b in range(2):
                a("s_cmp_eq_u32 %s, %d" % (sr(S_T), 4 * b + 4 + u))
                a("s_cbranch_scc1 L_wo%d_%s" % (2 * b + u // 2, tag))
            a.label("L_woback%d_%s" % (u // 2, tag))
        slot, nslot, fslot = PERM[u], PERM[(u + 1) & 3], PERM[(u + 3) & 3]
        vreads = []
        for db in range(4):
            for hr in range(2):
                for ks in range(2):
                    vreads.append("ds_read_b64_tr_b16 %s, %s offset:%d" % (
                        vr(V_VF + (db * 2 + ks) * 4 + 2 * hr, 2), vr(V_VAD + db * 2 + hr), 8192 + slot * 16384 + ks * 4096 + hr * 2048))
        kd = half_unit(S_K, fslot * 16384)
        vd = half_unit(S_V, fslot * 16384 + 8192)
        a("s_waitcnt vmcnt(12) lgkmcnt(0)")
        a("s_barrier")
        fa = []
        for i in range(8):
            fa += vreads[2 * i:2 * i + 2]
            if i == 3:
                fa.append("s_waitcnt lgkmcnt(4)")
        interleave(a, qk_mfmas(0, SB(0)), fa + kd[:3])
        interleave(a, qk_mfmas(1, SB(1)), kd[3:] + ["s_nop 7"] + softmax_ops(0, SB(0), tg + "0"))
        a("s_waitcnt lgkmcnt(0)")
        a("s_nop 0")
        sm1 = softmax_ops(1, SB(1), tg + "1")
        interleave(a, pv_mfmas(0, SB(0)), vd + ["s_nop 3"] + sm1)
        a("s_nop 1")
        tail = ["s_add_u32 %s, %s, 16384" % (sr(S_PF), sr(S_PF)),
                "s_add_u32 %s, %s, 1" % (sr(S_T), sr(S_T)),
                "s_mov_b32 %s, %s" % (sr(S_THR), sr(S_T8))] + k_reads_s(nslot)
        interleave(a, pv_mfmas(1, SB(1)), tail)
    a("s_cmp_lt_u32 %s, 16" % sr(S_T))
    a("s_cbranch_scc1 L_tile_%s" % tag)
    a("s_waitcnt vmcnt(0) lgkmcnt(0)")
    a("s_barrier")


def init_pass(a):
    for r in range(32):
        a("v_mov_b32 %s, 0" % vr(V_CM + r))
    for r in range(4):
        a("v_mov_b32 %s, 0x3f803f80" % vr(V_ONES + r))
    a("s_mov_b32 %s, 0xff800000" % sr(S_THR))
    a("s_nop 1")
    for r in range(0, 160, 16):
        a("v_mfma_f32_32x32x16_bf16 %s, %s, %s, 0" % (ar(r, 16), vr(V_CM, 4), vr(V_CM, 4)))


def combine2(a, tag, stflags=""):
    t = V_T0
    F, AD, RB, OWN, OUT = 32, 40, 64, 128, 192
    a("s_nop 7")
    a("s_nop 7")
    for j in range(2):
        a("v_accvgpr_read_b32 %s, %s" % (vr(t + 3 + 2 * j), ar(A_L + 16 * j)))
        a("v_sub_f32 %s, 0, %s" % (vr(t + 2 + 2 * j), vr(V_CM + 16 * j)))
    a("s_add_u32 %s, %s, 16384" % (sr(S_TMP), sr(S_RING)))
    a("v_lshlrev_b32 %s, 3, %s" % (vr(AD), vr(V_LANE)))
    a("v_add_u32 %s, %s, %s" % (vr(AD + 1), sr(S_TMP), vr(AD)))
    a("v_add_u32 %s, %s, %s" % (vr(AD + 2), sr(S_RING), vr(V_L16)))
    a("v_xor_b32 %s, 32768, %s" % (vr(AD + 3), vr(AD + 2)))
    a("s_waitcnt vmcnt(0)")
    a("ds_write_b64 %s, %s" % (vr(AD + 1), vr(t + 2, 2)))
    a("ds_write_b64 %s, %s offset:512" % (vr(AD + 1), vr(t + 4, 2)))
    a("v_xor_b32 %s, 32768, %s" % (vr(AD + 1), vr(AD + 1)))
    a("s_cmp_eq_u32 s47, 1")
    a("s_cbranch_scc1 L_cmb1_%s" % tag)
    for e in range(2):
        if e == 1:
            a.label("L_cmb1_%s" % tag)
        k = 0
        for j in range(2):
            for dd in range(2):
                for q in range(4):
                    a("ds_write_b128 %s, %s offset:%d" % (vr(AD + 2), ar(j * 64 + (2 * (1 - e) + dd) * 16 + 4 * q, 4),
                                                         k * 1024))
                    k += 1
        for j in range(2):
            for dd in range(2):
                for r in range(16):
                    a("v_accvgpr_read_b32 %s, %s" % (vr(OWN + (j * 2 + dd) * 16 + r), ar(j * 64 + (2 * e + dd) * 16 + r)))
        if e == 0:
            a("s_branch L_cmb2_%s" % tag)
    a.label("L_cmb2_%s" % tag)
    a("s_waitcnt lgkmcnt(0)")
    a("s_barrier")
    a("ds_read_b64 %s, %s" % (vr(F + 4, 2), vr(AD + 1)))
    a("ds_read_b64 %s, %s offset:512" % (vr(F + 6, 2), vr(AD + 1)))
    for k in range(12):
        a("ds_read_b128 %s, %s offset:%d" % (vr(RB + 4 * k, 4), vr(AD + 3), k * 1024))
    a("s_waitcnt lgkmcnt(12)")
    for j in range(2):
        mo, lo, mp, lp = t + 2 + 2 * j, t + 3 + 2 * j, F + 4 + 2 * j, F + 5 + 2 * j
        fo, fp = F + 2 * j, F + 2 * j + 1
        a("v_max_f32 %s, %s, %s" % (vr(t), vr(mo), vr(mp)))
        a("v_sub_f32 %s, %s, %s" % (vr(fo), vr(mo), vr(t)))
        a("v_sub_f32 %s, %s, %s" % (vr(fp), vr(mp), vr(t)))
        a("v_exp_f32 %s, %s" % (vr(fo), vr(fo)))
        a("v_exp_f32 %s, %s" % (vr(fp), vr(fp)))
        a("s_nop 0")
        a("v_mul_f32 %s, %s, %s" % (vr(t + 1), vr(fo), vr(lo)))
        a("v_fmac_f32 %s, %s, %s" % (vr(t + 1), vr(fp), vr(lp)))
        a("v_rcp_f32 %s, %s" % (vr(t + 1), vr(t + 1)))
        a("s_nop 0")
        a("v_mul_f32 %s, %s, %s" % (vr(fo), vr(fo), vr(t + 1)))
        a("v_mul_f32 %s, %s, %s" % (vr(fp), vr(fp), vr(t + 1)))
    for k in range(12, 16):
        a("ds_read_b128 %s, %s offset:%d" % (vr(RB + 4 * k, 4), vr(AD + 3), k * 1024))
    a("s_add_u32 %s, %s, 4096" % (sr(S_TMP), sr(S_OOFF)))
    for j in range(2):
        for dd in range(2):
            g = j * 2 + dd
            for r in range(16):
                a("v_mul_f32 %s, %s, %s" % (vr(OWN + g * 16 + r), vr(F + 2 * j), vr(OWN + g * 16 + r)))
            a("s_waitcnt lgkmcnt(%d)" % (12 - 4 * g))
            for r in range(16):
                a("v_fmac_f32 %s, %s, %s" % (vr(OWN + g * 16 + r), vr(F + 2 * j + 1), vr(RB + g * 16 + r)))
            for half in range(2):
                o4 = OUT + (g * 2 + half) * 4
                for e in range(4):
                    a("v_cvt_pk_bf16_f32 %s, %s, %s" % (vr(o4 + e), vr(OWN + g * 16 + half * 8 + 2 * e), vr(OWN + g * 16 + half * 8 + 2 * e + 1)))
                a("buffer_store_dwordx4 %s, %s, %s, %s offen offset:%d%s" % (vr(o4, 4), vr(V_L16), sr(S_O, 4),
                                                                           sr(S_TMP if j else S_OOFF), (dd * 2 + half) * 1024, stflags))


def poll(a, tag, s_off, nflags):
    a("v_lshlrev_b32 v246, 3, %s" % vr(V_LANE))
    a("v_min_u32 v246, %d, v246" % ((nflags - 1) * 8))
    a("s_mov_b32 s85, 0")
    a.label("L_poll_%s" % tag)
    a("buffer_load_dwordx2 v[248:249], v246, %s, %s offen sc1" % (sr(S_O, 4), sr(s_off)))
    a("s_add_u32 s85, s85, 1")
    a("s_waitcnt vmcnt(0)")
    a("v_cmp_ne_u64 vcc, v[248:249], %s" % vr(V_NONCE, 2))
    a("s_cbranch_vccz L_pdone_%s" % tag)
    a("s_sleep 2")
    a("s_cmp_lt_u32 s85, %d" % OPT["spin"])
    a("s_cbranch_scc1 L_poll_%s" % tag)
    a.label("L_pdone_%s" % tag)


def need_nonce(a, tag):
    a("s_mov_b32 s85, 0")
    a.label("L_nn_%s" % tag)
    a("s_waitcnt vmcnt(0)")
    a("v_cmp_eq_u32 vcc, 0, %s" % vr(V_NONCE))
    a("s_cbranch_vccz L_nd_%s" % tag)
    a("v_mov_b32 v246, 0")
    a("buffer_load_dwordx2 %s, v246, %s, 0 offen sc1" % (vr(V_NONCE, 2), sr(S_D, 4)))
    a("s_add_u32 s85, s85, 1")
    a("s_cmp_lt_u32 s85, %d" % OPT["spin"])
    a("s_cbranch_scc1 L_nn_%s" % tag)
    a.label("L_nd_%s" % tag)


def signal(a, s_off):
    a("s_waitcnt vmcnt(0)")
    a("v_mov_b32 v246, 0")
    a("s_mov_b64 exec, 1")
    a("buffer_store_dwordx2 %s, v246, %s, %s offen sc1" % (vr(V_NONCE, 2), sr(S_O, 4), sr(s_off)))
    a("s_mov_b64 exec, -1")


PWB = 160
WF, V_ACC = 32, 96


def g_setup(a):
    t0, t1, t2 = 8, 9, 10
    L = V_LANE
    a("v_lshlrev_b32 v1, 4, v0")
    a("v_add_u32 v2, %s, v1" % sr(S_W2K))
    a("v_add_u32 v3, 65536, v2")
    a("v_bfe_u32 %s, %s, 4, 1" % (vr(t0), vr(L)))
    a("v_and_b32 %s, 1, %s" % (vr(t1), vr(L)))
    a("v_lshl_add_u32 %s, %s, 1, %s" % (vr(t0), vr(t0), vr(t1)))
    a("v_lshrrev_b32 %s, 5, %s" % (vr(t1), vr(L)))
    a("v_lshlrev_b32 %s, 1, %s" % (vr(t2), vr(t1)))
    a("v_xor_b32 %s, %s, %s" % (vr(t0), vr(t0), vr(t2)))
    a("v_bfe_u32 %s, %s, 2, 2" % (vr(t2), vr(L)))
    a("v_lshl_add_u32 %s, %s, 2, %s" % (vr(t0), vr(t2), vr(t0)))
    a("v_lshlrev_b32 %s, 4, %s" % (vr(t0), vr(t0)))
    a("v_lshl_add_u32 %s, %s, 3, %s" % (vr(t1), vr(t1), vr(t2)))
    a("v_lshl_add_u32 %s, %s, 8, %s" % (vr(t0), vr(t1), vr(t0)))
    a("v_bfe_u32 %s, %s, 1, 1" % (vr(t1), vr(L)))
    a("v_lshl_add_u32 %s, %s, 3, %s" % (vr(PWB), vr(t1), vr(t0)))
    for k in range(1, 8):
        a("v_xor_b32 %s, %d, %s" % (vr(PWB + k), (k >> 1) * 64 + (k & 1) * 16, vr(PWB)))
    for k in range(8):
        a("v_add_u32 %s, 65536, %s" % (vr(PWB + 8 + k), vr(PWB + k)))
        a("v_add_u32 %s, 131072, %s" % (vr(PWB + 16 + k), vr(PWB + k)))
    a("v_lshlrev_b32 v11, 3, %s" % vr(V_LANE))
    a("v_min_u32 v11, 56, v11")


def g_params(a, p):
    a("s_and_b32 s60, s45, 15")
    a("s_add_u32 s60, s60, %d" % (16 * p))
    a("s_lshl_b32 s61, s77, 1")
    a("s_add_u32 s61, s61, s46")
    a("s_add_u32 s61, s61, %d" % (8 * p))
    a("s_lshl_b32 s61, s61, 3")
    a("s_add_u32 s61, s61, s3")
    a("s_lshl_b32 s61, s61, 3")
    a("s_lshl_b32 %s, s61, 13" % sr(S_XOFF))
    a("s_lshl_b32 s59, s47, 12")
    a("s_add_u32 %s, %s, s59" % (sr(S_XOFF), sr(S_XOFF)))
    a("s_lshl_b32 s61, s61, 3")
    a("s_add_u32 s61, s61, %d" % FLAG_O)
    a("s_mov_b32 s85, 0")
    a("s_mov_b32 s83, 0xff")
    for r in range(4):
        a("v_mov_b32 %s, 0" % vr(WF + r))
    a("s_nop 1")
    for k in range(4):
        a("v_mfma_f32_32x32x16_bf16 %s, %s, %s, 0" % (vr(V_ACC + 16 * k, 16), vr(WF, 4), vr(WF, 4)))


def g_run(a, tag, pf):
    def xloads(c):
        a("s_add_u32 %s, %s, %d" % (sr(S_TMP), sr(S_XOFF), c * 8192))
        for k in range(4):
            a("buffer_load_dwordx4 %s, v1, %s, %s offen offset:%d sc1" % (ar(c * 16 + 4 * k, 4), sr(S_O, 4), sr(S_TMP), k * 1024))

    def wreads(c, s_, wf):
        o = (2 * c + (s_ >> 1)) * 8192
        if o >= 98304:
            o += 32768
        pb = PWB + 8 * (o >> 16)
        o = (o & 65535) + (s_ & 1) * 4096
        return ["ds_read_b64_tr_b16 %s, %s offset:%d" % (vr(wf + db * 4 + 2 * hr, 2), vr(pb + db * 2 + hr), o + hr * 1024)
                for db in range(4) for hr in range(2)]

    def mfm(c, s_, wf):
        return ["v_mfma_f32_32x32x16_bf16 %s, %s, %s, %s" % (vr(V_ACC + db * 16, 16), vr(wf + db * 4, 4), ar(c * 16 + s_ * 4, 4), vr(V_ACC + db * 16, 16))
                for db in range(4)]

    wfb = lambda i: WF + 16 * (i & 3)

    def wo_unit(u):
        return ["s_add_u32 s81, %s, %d" % (sr(S_WOFF), u * 32 * 1024),
                "buffer_load_dwordx4 %s, %s, %s, s81 offen" % (ar(128 + 8 * u, 4), vr(V_W0), sr(S_W, 4)),
                "buffer_load_dwordx4 %s, %s, %s, s81 offen offset:1024" % (ar(128 + 8 * u + 4, 4), vr(V_W0 + 1), sr(S_W, 4))]

    a.label("L_ground_%s" % tag)
    a("buffer_load_dwordx2 v[248:249], v11, %s, s61 offen sc1" % sr(S_O, 4))
    a("s_add_u32 s85, s85, 1")
    a("s_waitcnt vmcnt(0)")
    a("v_cmp_eq_u64 vcc, v[248:249], %s" % vr(V_NONCE, 2))
    a("s_cmp_ge_u32 s85, %d" % OPT["spin"])
    a("s_cselect_b32 s82, 0xff, vcc_lo")
    a("s_and_b32 s82, s82, s83")
    a("s_cbranch_scc1 L_gwork_%s" % tag)
    a("s_sleep 2")
    a("s_branch L_ground_%s" % tag)
    a.label("L_gwork_%s" % tag)
    a("s_cmp_eq_u32 s82, 0xff")
    a("s_cbranch_scc1 L_gfast_%s" % tag)
    for c in range(8):
        a("s_bitcmp1_b32 s82, %d" % c)
        a("s_cbranch_scc0 L_gl%d_%s" % (c, tag))
        xloads(c)
        a.label("L_gl%d_%s" % (c, tag))
    a("s_waitcnt vmcnt(0)")
    for c in range(8):
        a("s_bitcmp1_b32 s82, %d" % c)
        a("s_cbranch_scc0 L_gm%d_%s" % (c, tag))
        for x in wreads(c, 0, wfb(0)) + wreads(c, 1, wfb(1))[:6]:
            a(x)
        a("s_waitcnt lgkmcnt(6)")
        interleave(a, mfm(c, 0, wfb(0)), wreads(c, 1, wfb(1))[6:] + wreads(c, 2, wfb(2))[:6])
        a("s_waitcnt lgkmcnt(6)")
        interleave(a, mfm(c, 1, wfb(1)), wreads(c, 2, wfb(2))[6:] + wreads(c, 3, wfb(3))[:6])
        a("s_waitcnt lgkmcnt(6)")
        interleave(a, mfm(c, 2, wfb(2)), wreads(c, 3, wfb(3))[6:])
        a("s_waitcnt lgkmcnt(0)")
        for x in mfm(c, 3, wfb(3)):
            a(x)
        a.label("L_gm%d_%s" % (c, tag))
    a("s_andn2_b32 s83, s83, s82")
    a("s_cbranch_scc1 L_ground_%s" % tag)
    if pf:
        for u in range(16):
            for x in wo_unit(u):
                a(x)
    a("s_branch L_gdone_%s" % tag)
    a.label("L_gfast_%s" % tag)
    for c in range(8):
        xloads(c)
    allr = [wreads(i >> 2, i & 3, wfb(i)) for i in range(32)]
    flat = [x for r in allr for x in r]
    for x in flat[:14]:
        a(x)
    pos = 14
    nwo = 0
    for i in range(32):
        c, s_ = i >> 2, i & 3
        outstanding_after = pos - 8 * (i + 1)
        if s_ == 0:
            a("s_waitcnt vmcnt(%d) lgkmcnt(%d)" % (4 * (7 - c) + nwo, outstanding_after))
        else:
            a("s_waitcnt lgkmcnt(%d)" % outstanding_after)
        f = flat[pos:pos + 8]
        pos += len(f)
        if pf and i % 2 == 1:
            f = f[:4] + wo_unit(i // 2) + f[4:]
            nwo += 2
        interleave(a, mfm(c, s_, wfb(i)), f)
    a.label("L_gdone_%s" % tag)
    a("s_lshl_b32 s59, s60, 3")
    a("s_add_u32 s59, s59, s3")
    a("s_lshl_b32 s59, s59, 15")
    a("s_lshl_b32 s62, %s, 13" % sr(S_WAVE))
    a("s_add_u32 s59, s59, s62")
    a("s_add_u32 s59, s59, %d" % (8 << 20))
    a("s_add_u32 s62, s59, 4096")
    a("s_nop 7")
    for k in range(8):
        for e in range(4):
            a("v_cvt_pk_bf16_f32 %s, %s, %s" % (vr(192 + 4 * k + e), vr(V_ACC + 8 * k + 2 * e), vr(V_ACC + 8 * k + 2 * e + 1)))
        a("buffer_store_dwordx4 %s, v1, %s, %s offen offset:%d sc1" % (vr(192 + 4 * k, 4), sr(S_O, 4), "s59" if k < 4 else "s62", (k % 4) * 1024))
    a("s_lshl_b32 s63, s60, 2")
    a("s_add_u32 s63, s63, %s" % sr(S_WAVE))
    a("s_lshl_b32 s63, s63, 3")
    a("s_add_u32 s63, s63, s3")
    a("s_lshl_b32 s63, s63, 3")
    a("s_add_u32 s63, s63, %d" % FLAG_P)


def rjob(a, p, tag):
    a("s_and_b32 s60, s45, 15")
    a("s_add_u32 s60, s60, %d" % (16 * p))
    a("s_lshl_b32 s88, s60, 2")
    a("s_lshr_b32 s59, s3, 1")
    a("s_add_u32 s88, s88, s59")
    a("s_lshl_b32 s88, s88, 6")
    a("s_add_u32 s88, s88, %d" % FLAG_P)
    a("s_lshl_b32 s17, s3, 2")
    a("s_add_u32 s17, s17, %s" % sr(S_WAVE))
    a("s_lshl_b32 s18, s60, 18")
    a("s_lshl_b32 s19, s17, 10")
    a("s_add_u32 s18, s18, s19")
    a("s_add_u32 s18, s18, %d" % (8 << 20))
    a("s_lshl_b32 s12, s77, 7")
    a("s_lshr_b32 s13, s17, 3")
    a("s_lshl_b32 s13, s13, 5")
    a("s_add_u32 s12, s12, s13")
    a("s_lshl_b32 s12, s12, 11")
    a("s_lshl_b32 s13, s78, 8")
    a("s_add_u32 s12, s12, s13")
    a("s_and_b32 s13, s17, 7")
    a("s_lshl_b32 s13, s13, 5")
    a("s_add_u32 s12, s12, s13")
    a("s_add_u32 s12, s12, %d" % (p * 1024))
    a("v_lshlrev_b32 v1, 4, v0")
    a("v_and_b32 v2, 31, v0")
    a("v_lshlrev_b32 v2, 11, v2")
    a("v_lshrrev_b32 v3, 5, v0")
    a("v_lshl_add_u32 v2, v3, 4, v2")
    a("s_mov_b32 s14, 0xffff0000")
    poll(a, "p" + tag, 88, 8)
    for k in range(8):
        a("buffer_load_dwordx4 %s, v1, %s, s18 offen sc1" % (vr(64 + 4 * k, 4), sr(S_O, 4)))
        a("s_add_u32 s18, s18, 32768")
    for k in range(8):
        a("s_waitcnt vmcnt(%d)" % (7 - k))
        for e in range(4):
            src = vr(64 + 4 * k + e)
            d = 8 if k == 0 else 16
            a("v_lshlrev_b32 %s, 16, %s" % (vr(d + 2 * e), src))
            a("v_and_b32 %s, s14, %s" % (vr(d + 1 + 2 * e), src))
        if k:
            for e in range(8):
                a("v_add_f32 %s, %s, %s" % (vr(8 + e), vr(8 + e), vr(16 + e)))
    for e in range(4):
        a("v_cvt_pk_bf16_f32 %s, %s, %s" % (vr(4 + e), vr(8 + 2 * e), vr(9 + 2 * e)))
    a("buffer_store_dwordx4 v[4:7], v2, %s, s12 offen" % sr(S_OUT, 4))


def tail_a(a):
    g_setup(a)
    a("s_barrier")
    for u in range(12):
        for hh in range(2):
            o = u * 8192 + hh * 1024
            a("ds_write_b128 %s, %s offset:%d" % ("v2" if o < 65536 else "v3", ar(A_WO + 8 * u + 4 * hh, 4), o & 65535))
        if u % 4 == 3:
            a("s_waitcnt lgkmcnt(4)")
    need_nonce(a, "a")
    g_params(a, 0)
    signal(a, S_OFLAG)
    stamp(a, 6)
    a("s_waitcnt lgkmcnt(0)")
    a("s_barrier")
    a("s_mov_b32 %s, s64" % sr(S_W))
    a("s_mov_b32 %s, s65" % sr(S_W + 1))
    g_run(a, "a", True)
    a("s_barrier")
    a("v_add_u32 v4, 131072, v2")
    a("s_waitcnt vmcnt(8)")
    for u in range(16):
        for hh in range(2):
            o = u * 8192 + hh * 1024 + (32768 if u >= 12 else 0)
            a("ds_write_b128 %s, %s offset:%d" % (("v2", "v3", "v4")[o >> 16], ar(128 + 8 * u + 4 * hh, 4), o & 65535))
        if u % 4 == 3:
            a("s_waitcnt lgkmcnt(4)")
    signal(a, 63)
    stamp(a, 3)
    g_params(a, 1)
    a("s_waitcnt lgkmcnt(0)")
    a("s_barrier")
    stamp(a, 4)
    g_run(a, "b", False)
    signal(a, 63)
    stamp(a, 7)


def kernel1(a):
    a.label(K1NAME)
    a("s_cmp_ge_u32 s2, 256")
    a("s_cbranch_scc1 L_end1")
    a("s_load_dwordx16 %s, s[0:1], 0" % sr(S_P, 16))
    a("s_load_dwordx2 %s, s[0:1], 64" % sr(S_P + 16, 2))
    a("s_load_dwordx2 %s, s[0:1], 96" % sr(S_P + 18, 2))
    if OPT["fuse"]:
        a("s_load_dwordx2 s[86:87], s[0:1], 72")
        a("s_load_dwordx2 %s, s[0:1], 80" % sr(S_OUT, 2))
        a("s_load_dwordx2 %s, s[0:1], 88" % sr(S_D, 2))
        a("s_memrealtime s[90:91]")
    a("v_lshrrev_b32 v1, 6, v0")
    a("v_and_b32 %s, 63, v0" % vr(V_LANE))
    a("v_readfirstlane_b32 %s, v1" % sr(S_WAVE))
    a("s_and_b32 s3, s2, 7")
    a("s_lshr_b32 s45, s2, 3")
    a("s_cmp_ge_u32 s45, 16")
    a("s_cselect_b32 %s, 1, 0" % sr(S_TYPE))
    a("s_mov_b32 %s, %s" % (sr(S_C), f32hex(CEXP)))
    a("s_mov_b32 %s, %s" % (sr(S_T8), f32hex(TLAZY)))
    a("s_lshr_b32 s46, %s, 1" % sr(S_WAVE))
    a("s_and_b32 s47, %s, 1" % sr(S_WAVE))
    a("s_lshl_b32 %s, %s, 15" % (sr(S_RING), sr(S_WAVE)))
    a("s_lshl_b32 %s, %s, 11" % (sr(S_W2K), sr(S_WAVE)))
    a("s_waitcnt lgkmcnt(0)")
    a("s_cmp_eq_u32 %s, 1" % sr(S_TYPE))
    a("s_cbranch_scc1 L_setupA")
    a("s_and_b32 s76, s45, 3")
    a("s_lshl_b32 s77, s3, 2")
    a("s_add_u32 s76, s76, s77")
    a("s_lshr_b32 s77, s45, 2")
    a("s_lshl_b32 s79, s46, 2")
    a("s_add_u32 s79, s79, s77")
    a("s_lshl_b32 s78, s79, 5")
    a("s_add_u32 s78, s78, s76")
    a("s_lshl_b32 s78, s78, 18")
    a("s_add_u32 %s, %s, s78" % (sr(S_K), sr(S_P + 12)))
    a("s_addc_u32 %s, %s, 0" % (sr(S_K + 1), sr(S_P + 13)))
    a("s_add_u32 %s, %s, s78" % (sr(S_V), sr(S_P + 14)))
    a("s_addc_u32 %s, %s, 0" % (sr(S_V + 1), sr(S_P + 15)))
    a("s_mov_b32 %s, %s" % (sr(S_X), sr(S_P + 10)))
    a("s_mov_b32 %s, %s" % (sr(S_X + 1), sr(S_P + 11)))
    a("s_mov_b32 %s, %s" % (sr(S_W), sr(S_P + 16)))
    a("s_mov_b32 %s, %s" % (sr(S_W + 1), sr(S_P + 17)))
    a("s_lshl_b32 %s, s77, 16" % sr(S_XOFF))
    a("s_lshl_b32 s82, s77, 1")
    a("s_and_b32 s83, s45, 3")
    a("s_add_u32 s82, s82, s83")
    a("s_and_b32 s82, s82, %d" % (0 if OPT["norot"] else 7))
    a("s_lshl_b32 %s, s76, 8" % sr(S_WOFF))
    a("s_add_u32 %s, s79, 8" % sr(S_OFLAG))
    a("s_lshl_b32 %s, %s, 5" % (sr(S_OFLAG), sr(S_OFLAG)))
    a("s_add_u32 %s, %s, s76" % (sr(S_OFLAG), sr(S_OFLAG)))
    a("s_branch L_setup_done")
    a.label("L_setupA")
    a("s_sub_u32 s45, s45, 16")
    a("s_lshr_b32 s77, s45, 1")
    a("s_and_b32 s76, s45, 1")
    a("s_lshl_b32 s76, s76, 1")
    a("s_lshl_b32 s78, s3, 2")
    a("s_add_u32 s76, s76, s78")
    a("s_lshl_b32 s78, s77, 3")
    a("s_add_u32 s78, s78, s3")
    a("s_lshl_b32 s78, s78, 18")
    a("s_add_u32 %s, %s, s78" % (sr(S_K), sr(S_P + 2)))
    a("s_addc_u32 %s, %s, 0" % (sr(S_K + 1), sr(S_P + 3)))
    a("s_add_u32 %s, %s, s78" % (sr(S_V), sr(S_P + 4)))
    a("s_addc_u32 %s, %s, 0" % (sr(S_V + 1), sr(S_P + 5)))
    a("s_mov_b32 %s, %s" % (sr(S_X), sr(S_P + 0)))
    a("s_mov_b32 %s, %s" % (sr(S_X + 1), sr(S_P + 1)))
    a("s_mov_b32 %s, %s" % (sr(S_W), sr(S_P + 6)))
    a("s_mov_b32 %s, %s" % (sr(S_W + 1), sr(S_P + 7)))
    a("s_lshl_b32 %s, s77, 16" % sr(S_XOFF))
    a("s_lshl_b32 %s, s76, 8" % sr(S_WOFF))
    a("s_and_b32 s82, s45, 1")
    a("s_lshl_b32 s82, s82, 2")
    a("s_add_u32 s82, s82, s77")
    a("s_and_b32 s82, s82, %d" % (0 if OPT["norot"] else 7))
    a("s_lshl_b32 %s, s77, 5" % sr(S_OFLAG))
    a("s_add_u32 %s, %s, s76" % (sr(S_OFLAG), sr(S_OFLAG)))
    a("s_add_u32 %s, %s, s46" % (sr(S_OFLAG), sr(S_OFLAG)))
    a.label("L_setup_done")
    a("s_lshl_b32 %s, %s, 1" % (sr(S_OFLAG), sr(S_OFLAG)))
    a("s_add_u32 %s, %s, s47" % (sr(S_OFLAG), sr(S_OFLAG)))
    a("s_lshl_b32 %s, %s, 13" % (sr(S_OOFF), sr(S_OFLAG)))
    a("s_lshl_b32 %s, %s, 3" % (sr(S_OFLAG), sr(S_OFLAG)))
    a("s_add_u32 %s, %s, %d" % (sr(S_OFLAG), sr(S_OFLAG), FLAG_O))
    if OPT["fuse"]:
        a("s_mov_b32 s64, s86")
        a("s_mov_b32 s65, s87")
        a("s_mov_b32 %s, 256" % sr(S_D + 2))
        a("s_mov_b32 %s, 0x00020000" % sr(S_D + 3))
        a("s_mov_b32 %s, 1048576" % sr(S_OUT + 2))
        a("s_mov_b32 %s, 0x00020000" % sr(S_OUT + 3))
        a("s_or_b32 %s, %s, s2" % (sr(S_TMP), sr(S_WAVE)))
        a("s_cbranch_scc1 L_nononce")
        a("s_or_b32 s90, s90, 1")
        a("v_mov_b32 v244, s90")
        a("v_mov_b32 v245, s91")
        a("v_mov_b32 v248, 0")
        a("s_mov_b64 exec, 1")
        a("buffer_store_dwordx2 v[244:245], v248, %s, 0 offen sc1" % sr(S_D, 4))
        a("s_mov_b64 exec, -1")
        a.label("L_nononce")
    a("s_mov_b32 %s, 262144" % sr(S_K + 2))
    a("s_mov_b32 %s, 262144" % sr(S_V + 2))
    a("s_mov_b32 %s, 0x00020000" % sr(S_K + 3))
    a("s_mov_b32 %s, 0x00020000" % sr(S_V + 3))
    a("s_mov_b32 %s, 524288" % sr(S_X + 2))
    a("s_mov_b32 %s, 0x00020000" % sr(S_X + 3))
    a("s_mov_b32 %s, 4194304" % sr(S_W + 2))
    a("s_mov_b32 %s, 0x00020000" % sr(S_W + 3))
    a("s_mov_b32 %s, %s" % (sr(S_O), sr(S_P + 18)))
    a("s_mov_b32 %s, %s" % (sr(S_O + 1), sr(S_P + 19)))
    a("s_mov_b32 %s, %d" % (sr(S_O + 2), 25 << 20))
    a("s_mov_b32 %s, 0x00020000" % sr(S_O + 3))
    a("s_lshl_b32 %s, s47, 13" % sr(S_PF))
    stamp_srd(a, sr(S_P + 18), sr(S_P + 19))
    stamp(a, 0)
    fstamp(a)
    L = V_LANE
    a("v_lshlrev_b32 %s, 4, %s" % (vr(V_L16), vr(L)))
    a("v_lshrrev_b32 v40, 4, %s" % vr(L))
    a("v_and_b32 v41, 15, %s" % vr(L))
    a("v_lshlrev_b32 v42, 2, v40")
    a("v_xor_b32 v42, v42, v41")
    a("v_lshlrev_b32 v42, 4, v42")
    a("v_lshl_add_u32 %s, v40, 8, v42" % vr(V_DMA))
    for n in range(1, 4):
        a("v_xor_b32 %s, %d, %s" % (vr(V_DMA + n), 16 * n, vr(V_DMA)))
    a("v_and_b32 v43, 3, v41")
    a("v_lshlrev_b32 v43, 2, v43")
    a("v_lshrrev_b32 v44, 2, v41")
    a("v_or_b32 v43, v43, v44")
    a("v_lshrrev_b32 v44, 5, %s" % vr(L))
    a("v_xor_b32 v45, v44, v43")
    a("v_lshlrev_b32 v45, 4, v45")
    a("v_and_b32 v46, 31, %s" % vr(L))
    a("v_lshl_add_u32 %s, v46, 8, v45" % vr(V_QA0))
    a("v_add_u32 %s, %s, %s" % (vr(V_KAD), sr(S_RING), vr(V_QA0)))
    for k in range(1, 8):
        a("v_xor_b32 %s, %d, %s" % (vr(V_KAD + k), 32 * k, vr(V_KAD)))
    a("v_lshlrev_b32 %s, 13, v46" % vr(V_OVOFF))
    a("v_lshl_add_u32 %s, v44, 4, %s" % (vr(V_OVOFF), vr(V_OVOFF)))
    a("s_lshl_b32 %s, s47, 7" % sr(S_TMP))
    a("v_add_u32 %s, %s, %s" % (vr(V_OVOFF), sr(S_TMP), vr(V_OVOFF)))
    a("v_lshrrev_b32 v45, 2, v41")
    a("v_and_b32 v46, 1, v40")
    a("v_and_b32 v47, 1, v41")
    a("v_lshl_add_u32 v47, v46, 1, v47")
    a("v_xor_b32 v47, v47, v44")
    a("v_lshl_add_u32 v47, v45, 2, v47")
    a("v_lshlrev_b32 v47, 4, v47")
    a("v_bfe_u32 v46, v41, 1, 1")
    a("v_lshl_add_u32 v47, v46, 3, v47")
    a("v_lshl_add_u32 v45, v44, 2, v45")
    a("v_lshl_add_u32 v47, v45, 8, v47")
    a("v_add_u32 %s, %s, v47" % (vr(V_VAD), sr(S_RING)))
    for k in range(1, 8):
        a("v_xor_b32 %s, %d, %s" % (vr(V_VAD + k), 32 * k, vr(V_VAD)))
    VB = 32
    gemm_lds_setup(a, L, 1024, 8192, 47, VB)
    a("s_cmp_eq_u32 %s, 1" % sr(S_TYPE))
    a("s_cbranch_scc1 L_typeA")

    def kv_unit(u, nt):
        srd = S_K if u % 2 == 0 else S_V
        o = []
        for g in range(2):
            o.append("s_add_u32 m0, %s, %d" % (sr(S_RING), u * 8192 + g * 4096))
            o.append("s_add_u32 %s, %s, %d" % (sr(S_TMP), sr(S_PF), (u // 2) * 16384 + g * 4096))
            for n in range(4):
                o.append("buffer_load_dwordx4 %s, %s, %s offen offset:%d%s lds" % (
                    vr(V_DMA + n), sr(srd, 4), sr(S_TMP), n * 1024, " nt" if nt else ""))
        return o

    def qproj(NX, NCG, off, nt):
        done = set()

        shared = NX == 1
        if shared:
            a("s_lshl_b32 %s, s47, 16" % sr(S_RING2))
            a("s_lshl_b32 %s, s46, 12" % sr(S_TMP))
            a("s_add_u32 %s, %s, %s" % (sr(S_RING2), sr(S_RING2), sr(S_TMP)))
            a("s_add_u32 %s, %s, %s" % (sr(S_PF), sr(S_PF), sr(S_TMP)))
            a("s_lshl_b32 %s, s47, 16" % sr(S_TMP))
            a("s_sub_u32 %s, %s, %s" % (sr(S_TMP), sr(S_TMP), sr(S_RING)))
            for k in range(8):
                a("v_add_u32 %s, %s, %s" % (vr(V_KAD + k), sr(S_TMP), vr(V_KAD + k)))
                a("v_add_u32 %s, %s, %s" % (vr(V_VAD + k), sr(S_TMP), vr(V_VAD + k)))

        if shared:
            kv_needs = [[0, 2], [4, 6], [1, 3], [5, 7], [8, 10], [12, 14]]
            kv_code = lambda k: half_unit(S_K if k % 2 == 0 else S_V, PERM[k // 2] * 16384 + (k % 2) * 8192, (k // 2) * 16384)
        else:
            kv_needs = [[0, 1, 2, 3], [4, 5, 6, 7], [8, 9, 10, 11], [12, 13, 14, 15]]
            kv_code = lambda k: kv_unit(k, nt)
        V_FR, V_ACC = 64, 128
        late = gemm_lds(a, NX, NCG, 262144, 8192, VB, V_FR, V_ACC, S_X, S_W, S_XOFF, S_WOFF, 46, 46,
                        kv_needs, kv_code, idle=lambda: init_pass(a))
        a("s_barrier")
        for x in late:
            emit(a, x)
        a("s_add_u32 %s, %s, %d" % (sr(S_PF), sr(S_PF), 49152 if shared else 32768))
        fstamp(a)
        stamp(a, 1)
        a("s_lshl_b32 %s, s47, 7" % sr(S_TMP))
        a("v_xor_b32 v29, %s, %s" % (sr(S_TMP), vr(V_QA0)))
        a("s_lshl_b32 %s, s46, 14" % sr(S_TMP))
        a("s_add_u32 %s, %s, %d" % (sr(S_TMP), sr(S_TMP), SCR))
        a("v_add_u32 v29, %s, v29" % sr(S_TMP))
        a("s_nop 7")
        k = 0
        for dbl in range(2):
            for half in range(2):
                x = dbl * 64 + half * 32
                if x:
                    a("v_xor_b32 v30, %d, v29" % x)
                for qbl in range(2):
                    src = V_ACC + (dbl * 2 + qbl) * 16 + half * 8
                    dst = 64 + k * 4
                    k += 1
                    for e in range(8):
                        a("v_mul_f32 %s, %s, %s" % (vr(src + e), sr(S_C), vr(src + e)))
                    for e in range(4):
                        a("v_cvt_pk_bf16_f32 %s, %s, %s" % (vr(dst + e), vr(src + 2 * e), vr(src + 2 * e + 1)))
                    a("ds_write_b128 %s, %s offset:%d" % ("v30" if x else "v29", vr(dst, 4), qbl * 8192))
        a("s_waitcnt lgkmcnt(0)")
        a("s_barrier")
        a("v_add_u32 v29, %s, %s" % (sr(S_TMP), vr(V_QA0)))
        for s in range(8):
            if s:
                a("v_xor_b32 v30, %d, v29" % (32 * s))
            for qb in range(2):
                a("ds_read_b128 %s, %s offset:%d" % (vr(V_Q + (qb * 8 + s) * 4, 4), "v30" if s else "v29", qb * 8192))
            if s == 5:
                a("s_waitcnt lgkmcnt(4)")
        a("s_waitcnt lgkmcnt(0)")
        fstamp(a)
        fdump(a)
        stamp(a, 2)
        if OPT["fuse"]:
            a("s_barrier")
            job_params(a)
            if OPT["touch"]:
                a("v_min_u32 v246, 12, %s" % vr(V_LANE))
                a("v_lshlrev_b32 v246, 21, v246")
                a("buffer_load_dword v247, v246, %s, 0 offen sc1" % sr(S_O, 4))
                a("v_and_b32 v246, 15, %s" % vr(V_LANE))
                a("v_lshlrev_b32 v246, 16, v246")
                a("buffer_load_dword v248, v246, %s, 0 offen sc1" % sr(S_OUT, 4))
            a("v_mov_b32 v246, 0")
            a("buffer_load_dwordx2 %s, v246, %s, 0 offen sc1" % (vr(V_NONCE, 2), sr(S_D, 4)))
        if shared:
            a("s_waitcnt vmcnt(%d)" % (23 if OPT["touch"] else 21))
            a("s_barrier")
            for x in k_reads_s(PERM[0]):
                a(x)
        else:
            a("s_waitcnt vmcnt(%d)" % (27 if OPT["touch"] else 25))
            for x in k_reads(0):
                a(x)

    qproj(2, 1, 4, OPT["nt"] & 1)
    tile_loop(a, "b", OPT["nt"] & 1)
    stamp(a, 5)
    combine2(a, "b", " sc1")
    need_nonce(a, "b")
    signal(a, S_OFLAG)
    stamp(a, 6)
    rjob(a, 0, "a")
    stamp(a, 3)
    rjob(a, 1, "b")
    stamp(a, 7)
    a("s_endpgm")
    for par in range(2):
        slow_path(a, 0, V_S, "b%d0" % par)
        slow_path(a, 1, V_S + 16, "b%d1" % par)
    a.label("L_typeA")
    qproj(1, 2, 8, OPT["nt"] & 2)
    tile_loop_shared(a, "a")
    stamp(a, 5)
    combine2(a, "a", " sc1")
    tail_a(a)
    a.label("L_end1")
    a("s_endpgm")
    wo_blocks(a, "a")
    for par in range(4):
        slow_path(a, 0, V_S, "a%d0" % par)
        slow_path(a, 1, V_S + 16, "a%d1" % par)


def descriptor(name, vgpr, accum, sgpr=102):
    return """.amdhsa_kernel %s
  .amdhsa_next_free_vgpr %d
  .amdhsa_next_free_sgpr %d
  .amdhsa_accum_offset %d
  .amdhsa_group_segment_fixed_size 0
  .amdhsa_kernarg_size 104
  .amdhsa_user_sgpr_count 2
  .amdhsa_user_sgpr_kernarg_segment_ptr 1
  .amdhsa_system_sgpr_workgroup_id_x 1
.end_amdhsa_kernel
""" % (name, vgpr, sgpr, accum)


def main():
    out = HEADER
    if OPT["fuse"]:
        out += "; @launch grid=(256,1,1) block=(256,1,1) lds=%d\n" % LDS1
        ks = ((K1NAME, kernel1),)
    else:
        out += "; @launch kernel=attn_kernel grid=(256,1,1) block=(256,1,1) lds=%d\n" % LDS1
        if OPT["k2"]:
            out += "; @launch kernel=oproj_kernel grid=(256,1,1) block=(256,1,1) lds=163840\n"
            out += "; @launch kernel=oreduce_kernel grid=(256,1,1) block=(256,1,1) lds=0\n"
        ks = (("attn_kernel", kernel1), ("oproj_kernel", kernel2), ("oreduce_kernel", kernel3))
    out += '.amdgcn_target "amdgcn-amd-amdhsa--gfx950"\n.text\n'
    for nm, fn in ks:
        a = Asm()
        out += ".globl %s\n.p2align 8\n.type %s,@function\n" % (nm, nm)
        fn(a)
        out += a.text()
    out += '.section .rodata,"a"\n.p2align 6\n'
    out += descriptor(K1NAME, 512, 256)
    if not OPT["fuse"]:
        out += ".p2align 6\n"
        out += descriptor("oproj_kernel", 160, 160)
        out += ".p2align 6\n"
        out += descriptor("oreduce_kernel", 72, 72, 32)
    open(sys.argv[1], "w").write(out)


K1NAME = (NAME + "_kernel") if OPT["fuse"] else "attn_kernel"
main()
```

```python
import math, sys

NAME = "concat_heads__gqa_block_cached__mha_block_cached__near_ridge"

HEADER = """; Kernarg layout for this problem (104 bytes, ptrs only, base s[0:1]):
"""

OPT = dict(nt=0, nocompute=0, k2=1, stamp=0, qdma=1, rot=1, xort=2, rv=3, qreg=1, kvlate=0, norot=0, fine=0, fuse=1, spin=4000000, pre=12, res=2, touch=1, onep=1, gslp=8, rslp=2, pk=1, xah=4)
for arg in sys.argv[2:]:
    k, v = arg.split("=")
    OPT[k] = int(v)


def f32hex(x):
    import struct
    return "0x%08x" % struct.unpack("<I", struct.pack("<f", x))[0]


class Asm:
    def __init__(self):
        self.lines = []
        self.vm = 0
        self.uid = 0

    def __call__(self, s):
        self.lines.append("    " + s)

    def label(self, l):
        self.lines.append(l + ":")

    def c(self, s):
        self.lines.append("    ; " + s)

    def vmem(self, s):
        self(s)
        self.vm += 1
        return self.vm - 1

    def wait_vm(self, idx):
        n = self.vm - idx - 1
        assert 0 <= n
        n = min(n, 63)
        self("s_waitcnt vmcnt(%d)" % n)

    def text(self):
        return "\n".join(self.lines) + "\n"


def vr(b, n=1):
    return "v%d" % b if n == 1 else "v[%d:%d]" % (b, b + n - 1)


def ar(b, n=1):
    return "a%d" % b if n == 1 else "a[%d:%d]" % (b, b + n - 1)


def sr(b, n=1):
    return "s%d" % b if n == 1 else "s[%d:%d]" % (b, b + n - 1)


def interleave(a, mfmas, fillers, lead=0):
    n = len(mfmas)
    gaps = n - lead
    done = 0
    for i, m in enumerate(mfmas):
        a(m)
        if i >= lead and gaps > 0:
            want = (len(fillers) * (i - lead + 1) + gaps - 1) // gaps
            while done < want:
                emit(a, fillers[done])
                done += 1
    while done < len(fillers):
        emit(a, fillers[done])
        done += 1


def emit(a, f):
    if callable(f):
        f()
    elif f.startswith("buffer_"):
        a.vmem(f)
    elif "\n" in f:
        for x in f.split("\n"):
            emit(a, x)
    elif f.endswith(":"):
        a.label(f[:-1])
    else:
        a(f)


SCALE = 128 ** -0.5
CEXP = SCALE * math.log2(math.e)
TLAZY = 8.0
RING = 32768
SCR = 131072
STG = 65536
LDS1 = 163840
ITEM_JUMP = 4 * 32 * 262144 - 262144
SEL_LO = 0x05040100
SEL_HI = 0x07060302

S_K, S_V, S_X, S_W, S_O = 4, 8, 12, 16, 20
S_WAVE, S_TYPE, S_PF, S_T, S_RING = 24, 25, 26, 27, 28
S_XOFF, S_WOFF, S_C, S_SELLO, S_SELHI = 29, 30, 31, 32, 33
S_OOFF0, S_OOFF1, S_PASS, S_TMP, S_TMP2, S_M0K, S_M0V, S_FIRST = 34, 35, 36, 37, 38, 39, 40, 41
S_T8, S_JUMP, S_OOFF = 42, 43, 44
S_W2K, S_TMP3 = 80, 81
S_PFV, S_TK, S_TV, S_XORT = 85, 86, 87, 88
S_P = 48

V_LANE, V_KA, V_VA, V_TA, V_TB = 0, 1, 2, 3, 4
V_DMA = 5
V_MC = 9
V_L = 13
V_TMAX = 17
V_T0 = 18
V_OVOFF = 26
V_L16 = 27
V_QA0 = 28
V_VW = 31
V_VF = 32
V_KF = 64
V_S = 96
V_Q = 128
V_CM = 192
V_KAD = 224
V_VAD = 232
V_ONES = 240
A_L = 128
S_THR = 41
S_RING2 = 39
S_D = 68
S_OUT = 72
S_OFLAG = 89
V_NONCE = 244
FLAG_O = 24 << 20
FLAG_P = (24 << 20) + 8192


def gemm_lds_setup(a, L, XS, WS, s_dh, vb):
    vx0, vx1, vw0, vw1, px, pw, t0, t1 = vb, vb + 1, vb + 2, vb + 3, vb + 4, vb + 8, vb + 12, vb + 13
    a("v_lshrrev_b32 %s, 4, %s" % (vr(t0), vr(L)))
    a("v_and_b32 %s, 7, %s" % (vr(t1), vr(L)))
    a("v_xor_b32 %s, %s, %s" % (vr(t1), vr(t1), vr(t0)))
    a("v_lshlrev_b32 %s, 4, %s" % (vr(t1), vr(t1)))
    a("v_lshrrev_b32 %s, 3, %s" % (vr(t0), vr(L)))
    a("s_lshl_b32 %s, %s, 4" % (sr(S_TMP), sr(S_WAVE)))
    a("v_add_u32 %s, %s, %s" % (vr(t0), sr(S_TMP), vr(t0)))
    a("s_mov_b32 %s, %d" % (sr(S_TMP), XS))
    a("v_mul_lo_u32 %s, %s, %s" % (vr(t0), vr(t0), sr(S_TMP)))
    a("v_add_u32 %s, %s, %s" % (vr(vx0), vr(t0), vr(t1)))
    a("v_xor_b32 %s, 64, %s" % (vr(t1), vr(t1)))
    a("v_add_u32 %s, %s, %s" % (vr(vx1), vr(t0), vr(t1)))
    a("v_add_u32 %s, %d, %s" % (vr(vx1), 8 * XS - 1024, vr(vx1)))
    a("v_lshrrev_b32 %s, 4, %s" % (vr(t0), vr(L)))
    a("v_and_b32 %s, 15, %s" % (vr(t1), vr(L)))
    a("v_lshlrev_b32 %s, 2, %s" % (vr(vw0), vr(t0)))
    a("v_xor_b32 %s, %s, %s" % (vr(t1), vr(t1), vr(vw0)))
    a("s_lshl_b32 %s, %s, 1" % (sr(S_TMP), sr(S_WAVE)))
    a("s_and_b32 %s, %s, 3" % (sr(S_TMP), sr(S_TMP)))
    a("v_xor_b32 %s, %s, %s" % (vr(t1), sr(S_TMP), vr(t1)))
    a("v_lshlrev_b32 %s, 4, %s" % (vr(t1), vr(t1)))
    a("s_lshl_b32 %s, %s, 3" % (sr(S_TMP), sr(S_WAVE)))
    a("v_add_u32 %s, %s, %s" % (vr(t0), sr(S_TMP), vr(t0)))
    a("s_mov_b32 %s, %d" % (sr(S_TMP), WS))
    a("v_mul_lo_u32 %s, %s, %s" % (vr(t0), vr(t0), sr(S_TMP)))
    a("v_add_u32 %s, %s, %s" % (vr(vw0), vr(t0), vr(t1)))
    a("v_xor_b32 %s, 16, %s" % (vr(t1), vr(t1)))
    a("v_add_u32 %s, %s, %s" % (vr(vw1), vr(t0), vr(t1)))
    a("v_add_u32 %s, %d, %s" % (vr(vw1), 4 * WS - 1024, vr(vw1)))
    a("v_bfe_u32 %s, %s, 1, 3" % (vr(t0), vr(L)))
    a("v_lshrrev_b32 %s, 5, %s" % (vr(t1), vr(L)))
    a("v_xor_b32 %s, %s, %s" % (vr(t0), vr(t0), vr(t1)))
    a("v_lshlrev_b32 %s, 4, %s" % (vr(t0), vr(t0)))
    a("v_and_b32 %s, 31, %s" % (vr(t1), vr(L)))
    a("v_lshl_add_u32 %s, %s, 7, %s" % (vr(px), vr(t1), vr(t0)))
    for k in range(1, 4):
        a("v_xor_b32 %s, %d, %s" % (vr(px + k), 32 * k, vr(px)))
    a("v_bfe_u32 %s, %s, 4, 1" % (vr(t0), vr(L)))
    a("v_and_b32 %s, 1, %s" % (vr(t1), vr(L)))
    a("v_lshl_add_u32 %s, %s, 1, %s" % (vr(t0), vr(t0), vr(t1)))
    a("v_lshrrev_b32 %s, 5, %s" % (vr(t1), vr(L)))
    a("v_lshlrev_b32 %s, 1, %s" % (vr(pw + 1), vr(t1)))
    a("v_xor_b32 %s, %s, %s" % (vr(t0), vr(t0), vr(pw + 1)))
    a("v_bfe_u32 %s, %s, 2, 2" % (vr(pw + 1), vr(L)))
    a("v_lshl_add_u32 %s, %s, 2, %s" % (vr(t0), vr(pw + 1), vr(t0)))
    a("v_lshlrev_b32 %s, 4, %s" % (vr(t0), vr(t0)))
    a("v_lshl_add_u32 %s, %s, 3, %s" % (vr(t1), vr(t1), vr(pw + 1)))
    a("v_lshl_add_u32 %s, %s, 8, %s" % (vr(t0), vr(t1), vr(t0)))
    a("v_bfe_u32 %s, %s, 1, 1" % (vr(t1), vr(L)))
    a("v_lshl_add_u32 %s, %s, 3, %s" % (vr(t0), vr(t1), vr(t0)))
    a("s_lshl_b32 %s, %s, 7" % (sr(S_TMP), sr(s_dh)))
    a("v_xor_b32 %s, %s, %s" % (vr(pw), sr(S_TMP), vr(t0)))
    a("v_xor_b32 %s, 16, %s" % (vr(pw + 1), vr(pw)))
    a("v_xor_b32 %s, 64, %s" % (vr(pw + 2), vr(pw)))
    a("v_xor_b32 %s, 80, %s" % (vr(pw + 3), vr(pw)))


def blk_addr(b):
    return (b & 3) * 32768 + (b >> 2) * 8192 if b < 16 else SCR + (b - 16) * 8192


def plan_staging(NU, kv_needs, pre, reserve):
    total = 8 * NU
    order = []
    for need in kv_needs:
        order += [b for b in need if b not in order]
    order += [b for b in range(20) if b not in order]
    prio = {b: i for i, b in enumerate(order)}
    ub, ua = {}, {}
    for u in range(min(20, total)):
        ub[u] = order[u]
        ua[u] = -1 if u < pre else (u - pre) // (2 * NU)
    nxt = min(20, total)
    free = set()
    kv_at = {}
    kvi = 0
    for c in range(1, 9):
        free |= {ub[u] for u in range((c - 1) * NU, c * NU)}
        while True:
            if kvi < len(kv_needs) and set(kv_needs[kvi]) <= free and (kvi < reserve or nxt >= total):
                free -= set(kv_needs[kvi])
                kv_at[kvi] = c
                kvi += 1
                continue
            break
        held = set()
        for k in range(kvi, min(reserve, len(kv_needs))):
            held |= set(kv_needs[k])
        cand = sorted(free - held, key=lambda b: -prio[b])
        while nxt < total and cand and c < 8:
            b = cand.pop(0)
            free.discard(b)
            ub[nxt], ua[nxt] = b, c
            nxt += 1
        while kvi < len(kv_needs) and nxt >= total and set(kv_needs[kvi]) <= free:
            free -= set(kv_needs[kvi])
            kv_at[kvi] = c
            kvi += 1
    assert nxt >= total and kvi == len(kv_needs), (nxt, kvi)
    for u in range(total):
        assert ua[u] < u // NU, (u, ua[u])
    return ub, ua, kv_at


def gemm_lds(a, NX, NCG, XUS, WS, vb, v_fr, v_acc, srd_x, srd_w, s_xoff, s_woff, s_xsel, s_wsel,
             kv_needs, kv_code, idle=None, xflags=""):
    vx0, vx1, vw0, vw1, px, pw, t0, t1 = vb, vb + 1, vb + 2, vb + 3, vb + 4, vb + 8, vb + 12, vb + 13
    NU = NX + 2 * NCG
    NCH = 8
    total = NU * NCH
    ub, ua, kv_at = plan_staging(NU, kv_needs, OPT["pre"] if NU == 4 else OPT["pre"] + 3, OPT["res"] * (1 if NU == 4 else 2))
    slot_addr = lambda u: blk_addr(ub[u])
    lastop = {}

    def issue(u):
        c, k = divmod(u, NU)
        o = []
        if k == 0:
            o += ["s_lshl_b32 s83, s82, 7", "s_add_u32 s83, s83, %s" % sr(s_xoff), "s_mul_i32 s84, s82, %d" % (64 * WS),
                  "s_add_u32 s84, s84, %s" % sr(s_woff), "s_add_u32 s82, s82, 1", "s_and_b32 s82, s82, 7"]
        o.append("s_add_u32 m0, %s, %d" % (sr(S_W2K), slot_addr(u)))
        if k < NX:
            o.append("s_add_u32 %s, s83, %d" % (sr(S_TMP), k * XUS))
            v0_, v1_, srd, fl = vx0, vx1, srd_x, xflags
        else:
            cg, half = divmod(k - NX, 2)
            o.append("s_add_u32 %s, s84, %d" % (sr(S_TMP), (half * 32) * WS + cg * 256))
            v0_, v1_, srd, fl = vw0, vw1, srd_w, ""
        o.append("buffer_load_dwordx4 %s, %s, %s offen%s lds" % (vr(v0_), sr(srd, 4), sr(S_TMP), fl))
        o.append("buffer_load_dwordx4 %s, %s, %s offen offset:1024%s lds" % (vr(v1_), sr(srd, 4), sr(S_TMP), fl))
        o.append(lambda c=c: lastop.__setitem__(c, a.vm - 1))
        return o

    fstamp(a)
    for u in range(total):
        if ua[u] == -1:
            for x in issue(u):
                emit(a, x)
    if idle:
        idle()
    XF, WF = v_fr, v_fr + 32
    fstamp(a)
    for c in range(NCH):
        a.wait_vm(lastop[c])
        fstamp(a)
        a("s_barrier")
        fill = []
        for k in range(len(kv_needs)):
            if kv_at[k] == c:
                fill += kv_code(k)
        for u in range(total):
            if ua[u] == c:
                fill += issue(u)
        u0 = c * NU
        if NX == 2:
            a("s_mov_b32 %s, %d" % (sr(S_TMP2), slot_addr(u0)))
            a("s_cmp_eq_u32 %s, 0" % sr(s_xsel))
            a("s_cselect_b32 %s, %s, %d" % (sr(S_TMP2), sr(S_TMP2), slot_addr(u0 + 1)))
            xb = sr(S_TMP2)
        else:
            xb = "%d" % slot_addr(u0)
        reads = [[], []]
        for hf in range(2):
            rd = reads[hf]
            if NCG == 2:
                rd.append("s_mov_b32 %s, %d" % (sr(S_TMP3), slot_addr(u0 + NX + hf)))
                rd.append("s_cmp_eq_u32 %s, 0" % sr(s_wsel))
                rd.append("s_cselect_b32 %s, %s, %d" % (sr(S_TMP3), sr(S_TMP3), slot_addr(u0 + NX + 2 + hf)))
                wb = sr(S_TMP3)
            else:
                wb = "%d" % slot_addr(u0 + NX + hf)
            for k2 in range(2):
                s_ = hf * 2 + k2
                rd.append("v_add_u32 %s, %s, %s" % (vr(t0), xb, vr(px + s_)))
                for qbl in range(2):
                    rd.append("ds_read_b128 %s, %s offset:%d" % (vr(XF + (qbl * 4 + s_) * 4, 4), vr(t0), qbl * 4096))
            for dbl in range(2):
                for hr in range(2):
                    tt = t1 if hr else t0
                    rd.append("v_add_u32 %s, %s, %s" % (vr(tt), wb, vr(pw + dbl * 2 + hr)))
                    for k2 in range(2):
                        s_ = hf * 2 + k2
                        rd.append("ds_read_b64_tr_b16 %s, %s offset:%d" % (vr(WF + (dbl * 4 + s_) * 4 + 2 * hr, 2), vr(tt), k2 * 4096 + hr * 1024))
        for x in reads[0]:
            a(x)
        h = len(fill) // 3
        for x in fill[:h]:
            emit(a, x)
        a("s_waitcnt lgkmcnt(0)")
        interleave(a, mf(0, c, XF, WF, v_acc), reads[1])
        a("s_waitcnt lgkmcnt(0)")
        interleave(a, mf(1, c, XF, WF, v_acc), fill[h:])
    late = []
    for k in range(len(kv_needs)):
        if kv_at[k] == 8:
            late += kv_code(k)
    return late


def mf(hf, c, XF, WF, v_acc):
    out = []
    for k2 in range(2):
        s_ = hf * 2 + k2
        for dbl in range(2):
            for qbl in range(2):
                acc = vr(v_acc + (dbl * 2 + qbl) * 16, 16)
                out.append("v_mfma_f32_32x32x16_bf16 %s, %s, %s, %s" % (acc, vr(WF + (dbl * 4 + s_) * 4, 4), vr(XF + (qbl * 4 + s_) * 4, 4),
                                                                       "0" if (c == 0 and s_ == 0) else acc))
    return out


def dma_unit(a, srd, s_m0_base, slot_imm, s_goff, lst=None):
    out = []
    nt = " nt" if slot_imm else ""
    for g in range(2):
        if g == 0:
            out.append("s_mov_b32 m0, %s" % sr(s_m0_base))
            out.append("s_mov_b32 %s, %s" % (sr(S_TMP), sr(s_goff)))
        else:
            out.append("s_add_u32 m0, %s, 4096" % sr(s_m0_base))
            out.append("s_add_u32 %s, %s, 4096" % (sr(S_TMP), sr(s_goff)))
        for n in range(4):
            out.append("buffer_load_dwordx4 %s, %s, %s offen offset:%d%s lds" % (vr(V_DMA + n), sr(srd, 4), sr(S_TMP), n * 1024, nt))
    return out


def softmax_ops(j, sb, tag):
    f = []
    t0, t1, t2, t3, t4 = V_T0, V_T0 + 1, V_T0 + 2, V_T0 + 3, V_T0 + 4
    s = lambda i: vr(sb + i)
    f.append("v_max3_f32 %s, %s, %s, %s" % (vr(t0), s(0), s(1), s(2)))
    f.append("v_max3_f32 %s, %s, %s, %s" % (vr(t1), s(3), s(4), s(5)))
    f.append("v_max3_f32 %s, %s, %s, %s" % (vr(t2), s(6), s(7), s(8)))
    f.append("v_max3_f32 %s, %s, %s, %s" % (vr(t3), s(9), s(10), s(11)))
    f.append("v_max3_f32 %s, %s, %s, %s" % (vr(t4), s(12), s(13), s(14)))
    f.append("v_max3_f32 %s, %s, %s, %s" % (vr(t0), vr(t0), vr(t1), s(15)))
    f.append("v_max3_f32 %s, %s, %s, %s" % (vr(t2), vr(t2), vr(t3), vr(t4)))
    f.append("v_max_f32 %s, %s, %s" % (vr(V_TMAX), vr(t0), vr(t2)))
    f.append("v_cmp_lt_f32 vcc, %s, %s" % (sr(S_THR), vr(V_TMAX)))
    f.append("s_cbranch_vccnz L_slow_%s\nL_back_%s:" % (tag, tag))
    for i in range(16):
        f.append("v_exp_f32 %s, %s" % (s(i), s(i)))
        if i >= 3 and i % 2 == 1:
            p = (i - 3) // 2
            f.append("v_cvt_pk_bf16_f32 %s, %s, %s" % (s(p), s(2 * p), s(2 * p + 1)))
    f.append("s_nop 0")
    f.append("v_cvt_pk_bf16_f32 %s, %s, %s" % (s(7), s(14), s(15)))
    return f


def slow_path(a, j, sb, tag):
    t0, t1, t2 = V_T0, V_T0 + 1, V_T0 + 2
    a.label("L_slow_%s" % tag)
    a("v_mov_b32 %s, %s" % (vr(t0), vr(V_TMAX)))
    a("v_mov_b32 %s, %s" % (vr(t1), vr(V_TMAX)))
    a("s_nop 1")
    a("v_permlane32_swap_b32 %s, %s" % (vr(t0), vr(t1)))
    a("s_nop 1")
    a("v_max_f32 %s, %s, %s" % (vr(t0), vr(t0), vr(t1)))
    a("s_cmp_eq_u32 %s, 0" % sr(S_T))
    a("s_cbranch_scc1 L_slow2_%s" % tag)
    a("v_max_f32 %s, 0, %s" % (vr(t0), vr(t0)))
    a("v_sub_f32 %s, 0, %s" % (vr(t1), vr(t0)))
    a("v_exp_f32 %s, %s" % (vr(t1), vr(t1)))
    a("s_nop 7")
    a("s_nop 7")
    regs = list(range(j * 64, j * 64 + 64)) + list(range(A_L + 16 * j, A_L + 16 * j + 4))
    for r in range(0, len(regs), 4):
        for q in range(4):
            a("v_accvgpr_read_b32 %s, %s" % (vr(t2 + q), ar(regs[r + q])))
        for q in range(4):
            a("v_mul_f32 %s, %s, %s" % (vr(t2 + q), vr(t2 + q), vr(t1)))
        for q in range(4):
            a("v_accvgpr_write_b32 %s, %s" % (ar(regs[r + q]), vr(t2 + q)))
    a.label("L_slow2_%s" % tag)
    for i in range(16):
        a("v_sub_f32 %s, %s, %s" % (vr(sb + i), vr(sb + i), vr(t0)))
    for i in range(16):
        a("v_sub_f32 %s, %s, %s" % (vr(V_CM + 16 * j + i), vr(V_CM + 16 * j + i), vr(t0)))
    a("s_nop 1")
    a("s_branch L_back_%s" % tag)


def qk_mfmas(j, sb):
    out = []
    for s in range(8):
        d = vr(sb, 16)
        out.append("v_mfma_f32_32x32x16_bf16 %s, %s, %s, %s" % (d, vr(V_KF + 4 * s, 4), vr(V_Q + (j * 8 + s) * 4, 4), vr(V_CM + 16 * j, 16) if s == 0 else d))
    return out


def pv_mfmas(j, sb):
    out = []
    for ks in range(2):
        for db in range(4):
            o = ar(j * 64 + db * 16, 16)
            out.append("v_mfma_f32_32x32x16_bf16 %s, %s, %s, %s" % (o, vr(V_VF + (db * 2 + ks) * 4, 4), vr(sb + 4 * ks, 4), o))
        l = ar(A_L + 16 * j, 16)
        out.append("v_mfma_f32_32x32x16_bf16 %s, %s, %s, %s" % (l, vr(V_ONES, 4), vr(sb + 4 * ks, 4), l))
    return out


def stamp(a, idx, srd=None, base=0):
    if not OPT["stamp"]:
        return
    a("s_memrealtime s[90:91]")
    a("s_memtime s[94:95]")
    a("s_waitcnt lgkmcnt(0)")
    a("s_lshl_b32 s92, s2, 2")
    a("s_add_u32 s92, s92, %s" % sr(S_WAVE))
    a("s_lshl_b32 s92, s92, 6")
    a("s_add_u32 s92, s92, %d" % ((16 << 20) + base + idx * 4))
    a("v_mov_b32 v25, s90")
    a("v_mov_b32 v24, 0")
    a("buffer_store_dword v25, v24, s[96:99], s92 offen")
    a("v_mov_b32 v23, s94")
    a("buffer_store_dword v23, v24, s[96:99], s92 offen offset:32")
    a.vm += 2


FINE = [0]
def fstamp(a):
    if not OPT["fine"]:
        return
    a("s_memtime s[90:91]")
    a("s_waitcnt lgkmcnt(0)")
    a("v_writelane_b32 v250, s90, %d" % FINE[0])
    FINE[0] += 1


def fdump(a):
    if not OPT["fine"]:
        return
    a("s_lshl_b32 s92, s2, 2")
    a("s_add_u32 s92, s92, %s" % sr(S_WAVE))
    a("s_lshl_b32 s92, s92, 8")
    a("s_add_u32 s92, s92, %d" % (29 << 20))
    a("v_lshlrev_b32 v251, 2, v0")
    a("buffer_store_dword v250, v251, s[96:99], s92 offen")
    a.vm += 1
    FINE[0] = 1


def stamp_srd(a, lo, hi):
    if not OPT["stamp"]:
        return
    a("s_mov_b32 s96, %s" % lo)
    a("s_mov_b32 s97, %s" % hi)
    a("s_mov_b32 s98, %d" % (32 << 20))
    a("s_mov_b32 s99, 0x00020000")


A_WO = 160
V_W0 = 252


def job_params(a):
    a("s_lshr_b32 s45, s2, 3")
    a("s_bfe_u32 s77, s45, 0x20002")
    a("s_and_b32 s78, s45, 3")
    a("s_mov_b32 %s, %s" % (sr(S_W), sr(S_P + 8)))
    a("s_mov_b32 %s, %s" % (sr(S_W + 1), sr(S_P + 9)))
    a("s_lshl_b32 %s, s3, 19" % sr(S_WOFF))
    a("s_lshl_b32 s59, s78, 8")
    a("s_add_u32 %s, %s, s59" % (sr(S_WOFF), sr(S_WOFF)))
    t0, t1 = 246, 247
    a("v_lshrrev_b32 %s, 4, %s" % (vr(t0), vr(V_LANE)))
    a("v_and_b32 %s, 15, %s" % (vr(t1), vr(V_LANE)))
    a("v_lshlrev_b32 %s, 2, %s" % (vr(V_W0), vr(t0)))
    a("v_xor_b32 %s, %s, %s" % (vr(t1), vr(t1), vr(V_W0)))
    a("s_lshl_b32 %s, %s, 1" % (sr(S_TMP), sr(S_WAVE)))
    a("s_and_b32 %s, %s, 3" % (sr(S_TMP), sr(S_TMP)))
    a("v_xor_b32 %s, %s, %s" % (vr(t1), sr(S_TMP), vr(t1)))
    a("v_lshlrev_b32 %s, 4, %s" % (vr(t1), vr(t1)))
    a("s_lshl_b32 %s, %s, 3" % (sr(S_TMP), sr(S_WAVE)))
    a("v_add_u32 %s, %s, %s" % (vr(t0), sr(S_TMP), vr(t0)))
    a("v_lshlrev_b32 %s, 10, %s" % (vr(t0), vr(t0)))
    a("v_add_u32 %s, %s, %s" % (vr(V_W0), vr(t0), vr(t1)))
    a("v_xor_b32 %s, 16, %s" % (vr(t1), vr(t1)))
    a("v_add_u32 %s, %s, %s" % (vr(V_W0 + 1), vr(t0), vr(t1)))
    a("v_add_u32 %s, %d, %s" % (vr(V_W0 + 1), 4 * 1024 - 1024, vr(V_W0 + 1)))


def wo_blocks(a, tag):
    for b in range(4):
        a.label("L_wo%d_%s" % (b, tag))
        for u in range(4 * b, 4 * b + 4):
            a("s_add_u32 %s, %s, %d" % (sr(S_TMP), sr(S_WOFF), u * 32 * 1024))
            if u < 12:
                a("buffer_load_dwordx4 %s, %s, %s, %s offen" % (ar(A_WO + 8 * u, 4), vr(V_W0), sr(S_W, 4), sr(S_TMP)))
                a("buffer_load_dwordx4 %s, %s, %s, %s offen offset:1024" % (ar(A_WO + 8 * u + 4, 4), vr(V_W0 + 1), sr(S_W, 4), sr(S_TMP)))
            else:
                a("s_add_u32 m0, %s, %d" % (sr(S_W2K), SCR + (u - 12) * 8192))
                a("s_nop 0")
                a("buffer_load_dwordx4 %s, %s, %s offen lds" % (vr(V_W0), sr(S_W, 4), sr(S_TMP)))
                a("buffer_load_dwordx4 %s, %s, %s offen offset:1024 lds" % (vr(V_W0 + 1), sr(S_W, 4), sr(S_TMP)))
        a("s_branch L_woback%d_%s" % (b & 1, tag))


def dma_list(srd, lds_off, nt):
    out = []
    for g in range(2):
        out.append("s_add_u32 m0, %s, %d" % (sr(S_RING), lds_off + g * 4096))
        if g == 0:
            out.append("s_nop 0")
            so = S_PF
        else:
            out.append("s_add_u32 %s, %s, 4096" % (sr(S_TMP), sr(S_PF)))
            so = S_TMP
        for n in range(4):
            out.append("buffer_load_dwordx4 %s, %s, %s offen offset:%d%s lds" % (vr(V_DMA + n), sr(srd, 4), sr(so), n * 1024, " nt" if nt else ""))
    return out


def k_reads(par):
    return ["ds_read_b128 %s, %s offset:%d" % (vr(V_KF + 4 * s, 4), vr(V_KAD + s), par * 16384) for s in range(8)]


def tile_loop(a, tag, nt):
    a("s_mov_b32 %s, 0" % sr(S_T))
    a.label("L_tile_%s" % tag)
    SB = lambda j: V_S + 16 * (j & 1)
    for par in range(2):
        tg = "%s%d" % (tag, par)
        vreads = []
        for db in range(4):
            for hr in range(2):
                for ks in range(2):
                    vreads.append("ds_read_b64_tr_b16 %s, %s offset:%d" % (
                        vr(V_VF + (db * 2 + ks) * 4 + 2 * hr, 2), vr(V_VAD + db * 2 + hr), 8192 + par * 16384 + ks * 4096 + hr * 2048))
        kd = dma_list(S_K, par * 16384, nt)
        vd = dma_list(S_V, 8192 + par * 16384, nt)
        a("s_waitcnt vmcnt(16) lgkmcnt(0)")
        fa = []
        for i in range(8):
            fa += vreads[2 * i:2 * i + 2]
            if i == 3:
                fa.append("s_waitcnt lgkmcnt(4)")
        interleave(a, qk_mfmas(0, SB(0)), fa[:9] + kd[:3] + fa[9:] + kd[3:6])
        interleave(a, qk_mfmas(1, SB(1)), kd[6:] + ["s_nop 3"] + softmax_ops(0, SB(0), tg + "0"))
        a("s_waitcnt lgkmcnt(0)")
        a("s_nop 0")
        sm1 = softmax_ops(1, SB(1), tg + "1")
        interleave(a, pv_mfmas(0, SB(0)), vd[:6] + ["s_nop 3"] + sm1[:10] + vd[6:9] + sm1[10:22] + vd[9:] + sm1[22:])
        a("s_nop 1")
        tail = ["s_add_u32 %s, %s, 16384" % (sr(S_PF), sr(S_PF)),
                "s_add_u32 %s, %s, 1" % (sr(S_T), sr(S_T)),
                "s_mov_b32 %s, %s" % (sr(S_THR), sr(S_T8)),
                "s_waitcnt vmcnt(24)"] + k_reads(1 - par)
        interleave(a, pv_mfmas(1, SB(1)), tail)
    a("s_cmp_lt_u32 %s, 16" % sr(S_T))
    a("s_cbranch_scc1 L_tile_%s" % tag)
    a("s_waitcnt lgkmcnt(0)")


PERM = [0, 2, 1, 3]


def half_unit(srd, lds_off, goff_imm=None):
    out = ["s_add_u32 m0, %s, %d" % (sr(S_RING2), lds_off)]
    if goff_imm is None:
        out.append("s_nop 0")
        so = S_PF
    else:
        out.append("s_add_u32 %s, %s, %d" % (sr(S_TMP), sr(S_PF), goff_imm))
        so = S_TMP
    for n in range(4):
        out.append("buffer_load_dwordx4 %s, %s, %s offen offset:%d lds" % (vr(V_DMA + n), sr(srd, 4), sr(so), n * 1024))
    return out


def k_reads_s(slot):
    return ["ds_read_b128 %s, %s offset:%d" % (vr(V_KF + 4 * s, 4), vr(V_KAD + s), slot * 16384) for s in range(8)]


def tile_loop_shared(a, tag):
    a("s_mov_b32 %s, 0" % sr(S_T))
    a.label("L_tile_%s" % tag)
    for b in range(4):
        pass
    SB = lambda j: V_S + 16 * (j & 1)
    for u in range(4):
        tg = "%s%d" % (tag, u)
        if u % 2 == 0:
            for b in range(2):
                a("s_cmp_eq_u32 %s, %d" % (sr(S_T), 4 * b + 4 + u))
                a("s_cbranch_scc1 L_wo%d_%s" % (2 * b + u // 2, tag))
            a.label("L_woback%d_%s" % (u // 2, tag))
        slot, nslot, fslot = PERM[u], PERM[(u + 1) & 3], PERM[(u + 3) & 3]
        vreads = []
        for db in range(4):
            for hr in range(2):
                for ks in range(2):
                    vreads.append("ds_read_b64_tr_b16 %s, %s offset:%d" % (
                        vr(V_VF + (db * 2 + ks) * 4 + 2 * hr, 2), vr(V_VAD + db * 2 + hr), 8192 + slot * 16384 + ks * 4096 + hr * 2048))
        kd = half_unit(S_K, fslot * 16384)
        vd = half_unit(S_V, fslot * 16384 + 8192)
        a("s_waitcnt vmcnt(12) lgkmcnt(0)")
        a("s_barrier")
        fa = []
        for i in range(8):
            fa += vreads[2 * i:2 * i + 2]
            if i == 3:
                fa.append("s_waitcnt lgkmcnt(4)")
        interleave(a, qk_mfmas(0, SB(0)), fa + kd[:3])
        interleave(a, qk_mfmas(1, SB(1)), kd[3:] + ["s_nop 7"] + softmax_ops(0, SB(0), tg + "0"))
        a("s_waitcnt lgkmcnt(0)")
        a("s_nop 0")
        sm1 = softmax_ops(1, SB(1), tg + "1")
        interleave(a, pv_mfmas(0, SB(0)), vd + ["s_nop 3"] + sm1)
        a("s_nop 1")
        tail = ["s_add_u32 %s, %s, 16384" % (sr(S_PF), sr(S_PF)),
                "s_add_u32 %s, %s, 1" % (sr(S_T), sr(S_T)),
                "s_mov_b32 %s, %s" % (sr(S_THR), sr(S_T8))] + k_reads_s(nslot)
        interleave(a, pv_mfmas(1, SB(1)), tail)
    a("s_cmp_lt_u32 %s, 16" % sr(S_T))
    a("s_cbranch_scc1 L_tile_%s" % tag)
    a("s_waitcnt vmcnt(0) lgkmcnt(0)")
    a("s_barrier")


def init_pass(a):
    for r in range(32):
        a("v_mov_b32 %s, 0" % vr(V_CM + r))
    for r in range(4):
        a("v_mov_b32 %s, 0x3f803f80" % vr(V_ONES + r))
    a("s_mov_b32 %s, 0xff800000" % sr(S_THR))
    a("s_nop 1")
    for r in range(0, 160, 16):
        a("v_mfma_f32_32x32x16_bf16 %s, %s, %s, 0" % (ar(r, 16), vr(V_CM, 4), vr(V_CM, 4)))


def combine2(a, tag, stflags=""):
    t = V_T0
    F, AD, RB, OWN, OUT = 32, 40, 64, 128, 192
    a("s_nop 7")
    a("s_nop 7")
    for j in range(2):
        a("v_accvgpr_read_b32 %s, %s" % (vr(t + 3 + 2 * j), ar(A_L + 16 * j)))
        a("v_sub_f32 %s, 0, %s" % (vr(t + 2 + 2 * j), vr(V_CM + 16 * j)))
    a("s_add_u32 %s, %s, 16384" % (sr(S_TMP), sr(S_RING)))
    a("v_lshlrev_b32 %s, 3, %s" % (vr(AD), vr(V_LANE)))
    a("v_add_u32 %s, %s, %s" % (vr(AD + 1), sr(S_TMP), vr(AD)))
    a("v_add_u32 %s, %s, %s" % (vr(AD + 2), sr(S_RING), vr(V_L16)))
    a("v_xor_b32 %s, 32768, %s" % (vr(AD + 3), vr(AD + 2)))
    a("s_waitcnt vmcnt(0)")
    a("ds_write_b64 %s, %s" % (vr(AD + 1), vr(t + 2, 2)))
    a("ds_write_b64 %s, %s offset:512" % (vr(AD + 1), vr(t + 4, 2)))
    a("v_xor_b32 %s, 32768, %s" % (vr(AD + 1), vr(AD + 1)))
    a("s_cmp_eq_u32 s47, 1")
    a("s_cbranch_scc1 L_cmb1_%s" % tag)
    for e in range(2):
        if e == 1:
            a.label("L_cmb1_%s" % tag)
        k = 0
        for j in range(2):
            for dd in range(2):
                for q in range(4):
                    a("ds_write_b128 %s, %s offset:%d" % (vr(AD + 2), ar(j * 64 + (2 * (1 - e) + dd) * 16 + 4 * q, 4),
                                                         k * 1024))
                    k += 1
        for j in range(2):
            for dd in range(2):
                for r in range(16):
                    a("v_accvgpr_read_b32 %s, %s" % (vr(OWN + (j * 2 + dd) * 16 + r), ar(j * 64 + (2 * e + dd) * 16 + r)))
        if e == 0:
            a("s_branch L_cmb2_%s" % tag)
    a.label("L_cmb2_%s" % tag)
    a("s_waitcnt lgkmcnt(0)")
    a("s_barrier")
    a("ds_read_b64 %s, %s" % (vr(F + 4, 2), vr(AD + 1)))
    a("ds_read_b64 %s, %s offset:512" % (vr(F + 6, 2), vr(AD + 1)))
    for k in range(12):
        a("ds_read_b128 %s, %s offset:%d" % (vr(RB + 4 * k, 4), vr(AD + 3), k * 1024))
    a("s_waitcnt lgkmcnt(12)")
    for j in range(2):
        mo, lo, mp, lp = t + 2 + 2 * j, t + 3 + 2 * j, F + 4 + 2 * j, F + 5 + 2 * j
        fo, fp = F + 2 * j, F + 2 * j + 1
        a("v_max_f32 %s, %s, %s" % (vr(t), vr(mo), vr(mp)))
        a("v_sub_f32 %s, %s, %s" % (vr(fo), vr(mo), vr(t)))
        a("v_sub_f32 %s, %s, %s" % (vr(fp), vr(mp), vr(t)))
        a("v_exp_f32 %s, %s" % (vr(fo), vr(fo)))
        a("v_exp_f32 %s, %s" % (vr(fp), vr(fp)))
        a("s_nop 0")
        a("v_mul_f32 %s, %s, %s" % (vr(t + 1), vr(fo), vr(lo)))
        a("v_fmac_f32 %s, %s, %s" % (vr(t + 1), vr(fp), vr(lp)))
        a("v_rcp_f32 %s, %s" % (vr(t + 1), vr(t + 1)))
        a("s_nop 0")
        a("v_mul_f32 %s, %s, %s" % (vr(48 + 4 * j), vr(fo), vr(t + 1)))
        a("v_mul_f32 %s, %s, %s" % (vr(49 + 4 * j), vr(fo), vr(t + 1)))
        a("v_mul_f32 %s, %s, %s" % (vr(50 + 4 * j), vr(fp), vr(t + 1)))
        a("v_mul_f32 %s, %s, %s" % (vr(51 + 4 * j), vr(fp), vr(t + 1)))
        a("v_mul_f32 %s, %s, %s" % (vr(fo), vr(fo), vr(t + 1)))
        a("v_mul_f32 %s, %s, %s" % (vr(fp), vr(fp), vr(t + 1)))
    for k in range(12, 16):
        a("ds_read_b128 %s, %s offset:%d" % (vr(RB + 4 * k, 4), vr(AD + 3), k * 1024))
    a("s_add_u32 %s, %s, 4096" % (sr(S_TMP), sr(S_OOFF)))
    for j in range(2):
        for dd in range(2):
            g = j * 2 + dd
            if OPT["pk"]:
                for r in range(0, 16, 2):
                    a("v_pk_mul_f32 %s, %s, %s" % (vr(OWN + g * 16 + r, 2), vr(48 + 4 * j, 2), vr(OWN + g * 16 + r, 2)))
                a("s_waitcnt lgkmcnt(%d)" % (12 - 4 * g))
                for r in range(0, 16, 2):
                    a("v_pk_fma_f32 %s, %s, %s, %s" % (vr(OWN + g * 16 + r, 2), vr(50 + 4 * j, 2), vr(RB + g * 16 + r, 2), vr(OWN + g * 16 + r, 2)))
            else:
                for r in range(16):
                    a("v_mul_f32 %s, %s, %s" % (vr(OWN + g * 16 + r), vr(F + 2 * j), vr(OWN + g * 16 + r)))
                a("s_waitcnt lgkmcnt(%d)" % (12 - 4 * g))
                for r in range(16):
                    a("v_fmac_f32 %s, %s, %s" % (vr(OWN + g * 16 + r), vr(F + 2 * j + 1), vr(RB + g * 16 + r)))
            for half in range(2):
                o4 = OUT + (g * 2 + half) * 4
                for e in range(4):
                    a("v_cvt_pk_bf16_f32 %s, %s, %s" % (vr(o4 + e), vr(OWN + g * 16 + half * 8 + 2 * e), vr(OWN + g * 16 + half * 8 + 2 * e + 1)))
                a("buffer_store_dwordx4 %s, %s, %s, %s offen offset:%d%s" % (vr(o4, 4), vr(V_L16), sr(S_O, 4),
                                                                           sr(S_TMP if j else S_OOFF), (dd * 2 + half) * 1024, stflags))


def poll(a, tag, s_off, nflags):
    a("v_lshlrev_b32 v246, 3, %s" % vr(V_LANE))
    a("v_min_u32 v246, %d, v246" % ((nflags - 1) * 8))
    a("s_mov_b32 s85, 0")
    a.label("L_poll_%s" % tag)
    a("buffer_load_dwordx2 v[248:249], v246, %s, %s offen sc1" % (sr(S_O, 4), sr(s_off)))
    a("s_add_u32 s85, s85, 1")
    a("s_waitcnt vmcnt(0)")
    a("v_cmp_ne_u64 vcc, v[248:249], %s" % vr(V_NONCE, 2))
    a("s_cbranch_vccz L_pdone_%s" % tag)
    a("s_sleep %d" % OPT["rslp"])
    a("s_cmp_lt_u32 s85, %d" % OPT["spin"])
    a("s_cbranch_scc1 L_poll_%s" % tag)
    a.label("L_pdone_%s" % tag)


def need_nonce(a, tag):
    a("s_mov_b32 s85, 0")
    a.label("L_nn_%s" % tag)
    a("s_waitcnt vmcnt(0)")
    a("v_cmp_eq_u32 vcc, 0, %s" % vr(V_NONCE))
    a("s_cbranch_vccz L_nd_%s" % tag)
    a("v_mov_b32 v246, 0")
    a("buffer_load_dwordx2 %s, v246, %s, 0 offen sc1" % (vr(V_NONCE, 2), sr(S_D, 4)))
    a("s_add_u32 s85, s85, 1")
    a("s_cmp_lt_u32 s85, %d" % OPT["spin"])
    a("s_cbranch_scc1 L_nn_%s" % tag)
    a.label("L_nd_%s" % tag)


def signal(a, s_off):
    a("s_waitcnt vmcnt(0)")
    a("v_mov_b32 v246, 0")
    a("s_mov_b64 exec, 1")
    a("buffer_store_dwordx2 %s, v246, %s, %s offen sc1" % (vr(V_NONCE, 2), sr(S_O, 4), sr(s_off)))
    a("s_mov_b64 exec, -1")


PWB = 160
WF, V_ACC = 32, 96


def g_setup(a):
    t0, t1, t2 = 8, 9, 10
    L = V_LANE
    a("v_lshlrev_b32 v1, 4, v0")
    a("v_add_u32 v2, %s, v1" % sr(S_W2K))
    a("v_add_u32 v3, 65536, v2")
    a("v_bfe_u32 %s, %s, 4, 1" % (vr(t0), vr(L)))
    a("v_and_b32 %s, 1, %s" % (vr(t1), vr(L)))
    a("v_lshl_add_u32 %s, %s, 1, %s" % (vr(t0), vr(t0), vr(t1)))
    a("v_lshrrev_b32 %s, 5, %s" % (vr(t1), vr(L)))
    a("v_lshlrev_b32 %s, 1, %s" % (vr(t2), vr(t1)))
    a("v_xor_b32 %s, %s, %s" % (vr(t0), vr(t0), vr(t2)))
    a("v_bfe_u32 %s, %s, 2, 2" % (vr(t2), vr(L)))
    a("v_lshl_add_u32 %s, %s, 2, %s" % (vr(t0), vr(t2), vr(t0)))
    a("v_lshlrev_b32 %s, 4, %s" % (vr(t0), vr(t0)))
    a("v_lshl_add_u32 %s, %s, 3, %s" % (vr(t1), vr(t1), vr(t2)))
    a("v_lshl_add_u32 %s, %s, 8, %s" % (vr(t0), vr(t1), vr(t0)))
    a("v_bfe_u32 %s, %s, 1, 1" % (vr(t1), vr(L)))
    a("v_lshl_add_u32 %s, %s, 3, %s" % (vr(PWB), vr(t1), vr(t0)))
    for k in range(1, 8):
        a("v_xor_b32 %s, %d, %s" % (vr(PWB + k), (k >> 1) * 64 + (k & 1) * 16, vr(PWB)))
    for k in range(8):
        a("v_add_u32 %s, 65536, %s" % (vr(PWB + 8 + k), vr(PWB + k)))
        a("v_add_u32 %s, 131072, %s" % (vr(PWB + 16 + k), vr(PWB + k)))
    a("v_lshlrev_b32 v11, 3, %s" % vr(V_LANE))
    a("v_min_u32 v11, 56, v11")


def g_params(a, p):
    a("s_and_b32 s60, s45, 15")
    a("s_add_u32 s60, s60, %d" % (16 * p))
    a("s_lshl_b32 s61, s77, 1")
    a("s_add_u32 s61, s61, s46")
    a("s_add_u32 s61, s61, %d" % (8 * p))
    a("s_lshl_b32 s61, s61, 3")
    a("s_add_u32 s61, s61, s3")
    a("s_lshl_b32 s61, s61, 3")
    a("s_lshl_b32 %s, s61, 13" % sr(S_XOFF))
    a("s_lshl_b32 s59, s47, 12")
    a("s_add_u32 %s, %s, s59" % (sr(S_XOFF), sr(S_XOFF)))
    a("s_lshl_b32 s61, s61, 3")
    a("s_add_u32 s61, s61, %d" % FLAG_O)
    a("s_mov_b32 s85, 0")
    a("s_mov_b32 s83, 0xff")
    for r in range(4):
        a("v_mov_b32 %s, 0" % vr(WF + r))
    a("s_nop 1")
    for k in range(4):
        a("v_mfma_f32_32x32x16_bf16 %s, %s, %s, 0" % (vr(V_ACC + 16 * k, 16), vr(WF, 4), vr(WF, 4)))


def g_run(a, tag, pf):
    def xloads(c):
        a("s_add_u32 %s, %s, %d" % (sr(S_TMP), sr(S_XOFF), c * 8192))
        for k in range(4):
            a("buffer_load_dwordx4 %s, v1, %s, %s offen offset:%d sc1" % (ar(c * 16 + 4 * k, 4), sr(S_O, 4), sr(S_TMP), k * 1024))

    def wreads(c, s_, wf):
        o = (2 * c + (s_ >> 1)) * 8192
        if o >= 98304:
            o += 32768
        pb = PWB + 8 * (o >> 16)
        o = (o & 65535) + (s_ & 1) * 4096
        return ["ds_read_b64_tr_b16 %s, %s offset:%d" % (vr(wf + db * 4 + 2 * hr, 2), vr(pb + db * 2 + hr), o + hr * 1024)
                for db in range(4) for hr in range(2)]

    def mfm(c, s_, wf):
        return ["v_mfma_f32_32x32x16_bf16 %s, %s, %s, %s" % (vr(V_ACC + db * 16, 16), vr(wf + db * 4, 4), ar(c * 16 + s_ * 4, 4), vr(V_ACC + db * 16, 16))
                for db in range(4)]

    wfb = lambda i: WF + 16 * (i & 3)

    def wo_unit(u):
        return ["s_add_u32 s81, %s, %d" % (sr(S_WOFF), u * 32 * 1024),
                "buffer_load_dwordx4 %s, %s, %s, s81 offen" % (ar(128 + 8 * u, 4), vr(V_W0), sr(S_W, 4)),
                "buffer_load_dwordx4 %s, %s, %s, s81 offen offset:1024" % (ar(128 + 8 * u + 4, 4), vr(V_W0 + 1), sr(S_W, 4))]

    a.label("L_ground_%s" % tag)
    a("buffer_load_dwordx2 v[248:249], v11, %s, s61 offen sc1" % sr(S_O, 4))
    a.label("L_gchk_%s" % tag)
    a("s_add_u32 s85, s85, 1")
    a("s_waitcnt vmcnt(0)")
    a("v_cmp_eq_u64 vcc, v[248:249], %s" % vr(V_NONCE, 2))
    a("s_cmp_ge_u32 s85, %d" % OPT["spin"])
    a("s_cselect_b32 s82, 0xff, vcc_lo")
    a("s_and_b32 s82, s82, s83")
    a("s_cbranch_scc1 L_gwork_%s" % tag)
    a("s_sleep %d" % OPT["gslp"])
    a("s_branch L_ground_%s" % tag)
    a.label("L_gwork_%s" % tag)
    a("s_cmp_eq_u32 s82, 0xff")
    a("s_cbranch_scc1 L_gfast_%s" % tag)
    for c in range(8):
        a("s_bitcmp1_b32 s82, %d" % c)
        a("s_cbranch_scc0 L_gl%d_%s" % (c, tag))
        xloads(c)
        a.label("L_gl%d_%s" % (c, tag))
    a("s_waitcnt vmcnt(0)")
    a("buffer_load_dwordx2 v[248:249], v11, %s, s61 offen sc1" % sr(S_O, 4))
    for c in range(8):
        a("s_bitcmp1_b32 s82, %d" % c)
        a("s_cbranch_scc0 L_gm%d_%s" % (c, tag))
        for x in wreads(c, 0, wfb(0)) + wreads(c, 1, wfb(1))[:6]:
            a(x)
        a("s_waitcnt lgkmcnt(6)")
        interleave(a, mfm(c, 0, wfb(0)), wreads(c, 1, wfb(1))[6:] + wreads(c, 2, wfb(2))[:6])
        a("s_waitcnt lgkmcnt(6)")
        interleave(a, mfm(c, 1, wfb(1)), wreads(c, 2, wfb(2))[6:] + wreads(c, 3, wfb(3))[:6])
        a("s_waitcnt lgkmcnt(6)")
        interleave(a, mfm(c, 2, wfb(2)), wreads(c, 3, wfb(3))[6:])
        a("s_waitcnt lgkmcnt(0)")
        for x in mfm(c, 3, wfb(3)):
            a(x)
        a.label("L_gm%d_%s" % (c, tag))
    a("s_andn2_b32 s83, s83, s82")
    a("s_cbranch_scc1 L_gchk_%s" % tag)
    if pf:
        for u in range(16):
            for x in wo_unit(u):
                a(x)
    a("s_branch L_gdone_%s" % tag)
    a.label("L_gfast_%s" % tag)
    xl = lambda c: ["s_add_u32 %s, %s, %d" % (sr(S_TMP), sr(S_XOFF), c * 8192)] + [
        "buffer_load_dwordx4 %s, v1, %s, %s offen offset:%d sc1" % (ar(c * 16 + 4 * k, 4), sr(S_O, 4), sr(S_TMP), k * 1024) for k in range(4)]
    xlast = {}
    AHEAD = OPT["xah"]
    for c in range(AHEAD):
        for x in xl(c):
            emit(a, x)
        xlast[c] = a.vm - 1
    allr = [wreads(i >> 2, i & 3, wfb(i)) for i in range(32)]
    flat = [x for r in allr for x in r]
    for x in flat[:14]:
        a(x)
    pos = 14
    wo_left = list(range(16)) if pf else []
    for i in range(32):
        c, s_ = i >> 2, i & 3
        outstanding_after = pos - 8 * (i + 1)
        if s_ == 0:
            a("s_waitcnt vmcnt(%d) lgkmcnt(%d)" % (min(63, a.vm - 1 - xlast[c]), outstanding_after))
        else:
            a("s_waitcnt lgkmcnt(%d)" % outstanding_after)
        f = flat[pos:pos + 8]
        pos += len(f)
        cn = c + AHEAD
        if cn < 8 and s_ < 2:
            part = xl(cn)[:3] if s_ == 0 else xl(cn)[3:] + [lambda cn=cn: xlast.__setitem__(cn, a.vm - 1)]
            f = f[:4] + part + f[4:]
        elif wo_left and (cn >= 8 or (cn == 7 and s_ >= 2)):
            f = f[:3] + wo_unit(wo_left.pop(0)) + f[3:6] + (wo_unit(wo_left.pop(0)) if (wo_left and AHEAD < 4) else []) + f[6:]
        interleave(a, mfm(c, s_, wfb(i)), f)
    for u in wo_left:
        for x in wo_unit(u):
            a(x)
    a.label("L_gdone_%s" % tag)
    a("s_lshl_b32 s59, s60, 3")
    a("s_add_u32 s59, s59, s3")
    a("s_lshl_b32 s59, s59, 15")
    a("s_lshl_b32 s62, %s, 13" % sr(S_WAVE))
    a("s_add_u32 s59, s59, s62")
    a("s_add_u32 s59, s59, %d" % (8 << 20))
    a("s_add_u32 s62, s59, 4096")
    a("s_nop 7")
    for k in range(8):
        for e in range(4):
            a("v_cvt_pk_bf16_f32 %s, %s, %s" % (vr(192 + 4 * k + e), vr(V_ACC + 8 * k + 2 * e), vr(V_ACC + 8 * k + 2 * e + 1)))
        a("buffer_store_dwordx4 %s, v1, %s, %s offen offset:%d sc1" % (vr(192 + 4 * k, 4), sr(S_O, 4), "s59" if k < 4 else "s62", (k % 4) * 1024))
    a("s_lshl_b32 s63, s60, 2")
    a("s_add_u32 s63, s63, %s" % sr(S_WAVE))
    a("s_lshl_b32 s63, s63, 3")
    a("s_add_u32 s63, s63, s3")
    a("s_lshl_b32 s63, s63, 3")
    a("s_add_u32 s63, s63, %d" % FLAG_P)


def rjob(a, p, tag):
    a("s_and_b32 s60, s45, 15")
    a("s_add_u32 s60, s60, %d" % (16 * p))
    a("s_lshl_b32 s88, s60, 2")
    a("s_lshr_b32 s59, s3, 1")
    a("s_add_u32 s88, s88, s59")
    a("s_lshl_b32 s88, s88, 6")
    a("s_add_u32 s88, s88, %d" % FLAG_P)
    a("s_lshl_b32 s17, s3, 2")
    a("s_add_u32 s17, s17, %s" % sr(S_WAVE))
    a("s_lshl_b32 s18, s60, 18")
    a("s_lshl_b32 s19, s17, 10")
    a("s_add_u32 s18, s18, s19")
    a("s_add_u32 s18, s18, %d" % (8 << 20))
    a("s_lshl_b32 s12, s77, 7")
    a("s_lshr_b32 s13, s17, 3")
    a("s_lshl_b32 s13, s13, 5")
    a("s_add_u32 s12, s12, s13")
    a("s_lshl_b32 s12, s12, 11")
    a("s_lshl_b32 s13, s78, 8")
    a("s_add_u32 s12, s12, s13")
    a("s_and_b32 s13, s17, 7")
    a("s_lshl_b32 s13, s13, 5")
    a("s_add_u32 s12, s12, s13")
    a("s_add_u32 s12, s12, %d" % (p * 1024))
    a("v_lshlrev_b32 v1, 4, v0")
    a("v_and_b32 v2, 31, v0")
    a("v_lshlrev_b32 v2, 11, v2")
    a("v_lshrrev_b32 v3, 5, v0")
    a("v_lshl_add_u32 v2, v3, 4, v2")
    a("s_mov_b32 s14, 0xffff0000")
    if OPT["onep"]:
        a("s_cmp_lg_u32 %s, 0" % sr(S_WAVE))
        a("s_cbranch_scc1 L_pdone_p%s" % tag)
    poll(a, "p" + tag, 88, 8)
    if OPT["onep"]:
        a("s_barrier")
    for k in range(8):
        a("buffer_load_dwordx4 %s, v1, %s, s18 offen sc1" % (vr(64 + 4 * k, 4), sr(S_O, 4)))
        a("s_add_u32 s18, s18, 32768")
    for k in range(8):
        a("s_waitcnt vmcnt(%d)" % (7 - k))
        for e in range(4):
            src = vr(64 + 4 * k + e)
            d = 8 if k == 0 else 16
            a("v_lshlrev_b32 %s, 16, %s" % (vr(d + 2 * e), src))
            a("v_and_b32 %s, s14, %s" % (vr(d + 1 + 2 * e), src))
        if k:
            for e in range(8):
                a("v_add_f32 %s, %s, %s" % (vr(8 + e), vr(8 + e), vr(16 + e)))
    for e in range(4):
        a("v_cvt_pk_bf16_f32 %s, %s, %s" % (vr(4 + e), vr(8 + 2 * e), vr(9 + 2 * e)))
    a("buffer_store_dwordx4 v[4:7], v2, %s, s12 offen" % sr(S_OUT, 4))


def tail_a(a):
    g_setup(a)
    a("s_barrier")
    for u in range(12):
        for hh in range(2):
            o = u * 8192 + hh * 1024
            a("ds_write_b128 %s, %s offset:%d" % ("v2" if o < 65536 else "v3", ar(A_WO + 8 * u + 4 * hh, 4), o & 65535))
        if u % 4 == 3:
            a("s_waitcnt lgkmcnt(4)")
    need_nonce(a, "a")
    g_params(a, 0)
    signal(a, S_OFLAG)
    stamp(a, 6)
    a("s_waitcnt lgkmcnt(0)")
    a("s_barrier")
    a("s_mov_b32 %s, s64" % sr(S_W))
    a("s_mov_b32 %s, s65" % sr(S_W + 1))
    g_run(a, "a", True)
    a("s_barrier")
    a("v_add_u32 v4, 131072, v2")
    a("s_waitcnt vmcnt(8)")
    for u in range(16):
        for hh in range(2):
            o = u * 8192 + hh * 1024 + (32768 if u >= 12 else 0)
            a("ds_write_b128 %s, %s offset:%d" % (("v2", "v3", "v4")[o >> 16], ar(128 + 8 * u + 4 * hh, 4), o & 65535))
        if u % 4 == 3:
            a("s_waitcnt lgkmcnt(4)")
    signal(a, 63)
    stamp(a, 3)
    g_params(a, 1)
    a("s_waitcnt lgkmcnt(0)")
    a("s_barrier")
    stamp(a, 4)
    g_run(a, "b", False)
    signal(a, 63)
    stamp(a, 7)


def kernel1(a):
    a.label(K1NAME)
    a("s_cmp_ge_u32 s2, 256")
    a("s_cbranch_scc1 L_end1")
    a("s_load_dwordx16 %s, s[0:1], 0" % sr(S_P, 16))
    a("s_load_dwordx2 %s, s[0:1], 64" % sr(S_P + 16, 2))
    a("s_load_dwordx2 %s, s[0:1], 96" % sr(S_P + 18, 2))
    if OPT["fuse"]:
        a("s_load_dwordx2 s[86:87], s[0:1], 72")
        a("s_load_dwordx2 %s, s[0:1], 80" % sr(S_OUT, 2))
        a("s_load_dwordx2 %s, s[0:1], 88" % sr(S_D, 2))
        a("s_memrealtime s[90:91]")
    a("v_lshrrev_b32 v1, 6, v0")
    a("v_and_b32 %s, 63, v0" % vr(V_LANE))
    a("v_readfirstlane_b32 %s, v1" % sr(S_WAVE))
    a("s_and_b32 s3, s2, 7")
    a("s_lshr_b32 s45, s2, 3")
    a("s_cmp_ge_u32 s45, 16")
    a("s_cselect_b32 %s, 1, 0" % sr(S_TYPE))
    a("s_mov_b32 %s, %s" % (sr(S_C), f32hex(CEXP)))
    a("s_mov_b32 %s, %s" % (sr(S_T8), f32hex(TLAZY)))
    a("s_lshr_b32 s46, %s, 1" % sr(S_WAVE))
    a("s_and_b32 s47, %s, 1" % sr(S_WAVE))
    a("s_lshl_b32 %s, %s, 15" % (sr(S_RING), sr(S_WAVE)))
    a("s_lshl_b32 %s, %s, 11" % (sr(S_W2K), sr(S_WAVE)))
    a("s_waitcnt lgkmcnt(0)")
    a("s_cmp_eq_u32 %s, 1" % sr(S_TYPE))
    a("s_cbranch_scc1 L_setupA")
    a("s_and_b32 s76, s45, 3")
    a("s_lshl_b32 s77, s3, 2")
    a("s_add_u32 s76, s76, s77")
    a("s_lshr_b32 s77, s45, 2")
    a("s_lshl_b32 s79, s46, 2")
    a("s_add_u32 s79, s79, s77")
    a("s_lshl_b32 s78, s79, 5")
    a("s_add_u32 s78, s78, s76")
    a("s_lshl_b32 s78, s78, 18")
    a("s_add_u32 %s, %s, s78" % (sr(S_K), sr(S_P + 12)))
    a("s_addc_u32 %s, %s, 0" % (sr(S_K + 1), sr(S_P + 13)))
    a("s_add_u32 %s, %s, s78" % (sr(S_V), sr(S_P + 14)))
    a("s_addc_u32 %s, %s, 0" % (sr(S_V + 1), sr(S_P + 15)))
    a("s_mov_b32 %s, %s" % (sr(S_X), sr(S_P + 10)))
    a("s_mov_b32 %s, %s" % (sr(S_X + 1), sr(S_P + 11)))
    a("s_mov_b32 %s, %s" % (sr(S_W), sr(S_P + 16)))
    a("s_mov_b32 %s, %s" % (sr(S_W + 1), sr(S_P + 17)))
    a("s_lshl_b32 %s, s77, 16" % sr(S_XOFF))
    a("s_lshl_b32 s82, s77, 1")
    a("s_and_b32 s83, s45, 3")
    a("s_add_u32 s82, s82, s83")
    a("s_and_b32 s82, s82, %d" % (0 if OPT["norot"] else 7))
    a("s_lshl_b32 %s, s76, 8" % sr(S_WOFF))
    a("s_add_u32 %s, s79, 8" % sr(S_OFLAG))
    a("s_lshl_b32 %s, %s, 5" % (sr(S_OFLAG), sr(S_OFLAG)))
    a("s_add_u32 %s, %s, s76" % (sr(S_OFLAG), sr(S_OFLAG)))
    a("s_branch L_setup_done")
    a.label("L_setupA")
    a("s_sub_u32 s45, s45, 16")
    a("s_lshr_b32 s77, s45, 1")
    a("s_and_b32 s76, s45, 1")
    a("s_lshl_b32 s76, s76, 1")
    a("s_lshl_b32 s78, s3, 2")
    a("s_add_u32 s76, s76, s78")
    a("s_lshl_b32 s78, s77, 3")
    a("s_add_u32 s78, s78, s3")
    a("s_lshl_b32 s78, s78, 18")
    a("s_add_u32 %s, %s, s78" % (sr(S_K), sr(S_P + 2)))
    a("s_addc_u32 %s, %s, 0" % (sr(S_K + 1), sr(S_P + 3)))
    a("s_add_u32 %s, %s, s78" % (sr(S_V), sr(S_P + 4)))
    a("s_addc_u32 %s, %s, 0" % (sr(S_V + 1), sr(S_P + 5)))
    a("s_mov_b32 %s, %s" % (sr(S_X), sr(S_P + 0)))
    a("s_mov_b32 %s, %s" % (sr(S_X + 1), sr(S_P + 1)))
    a("s_mov_b32 %s, %s" % (sr(S_W), sr(S_P + 6)))
    a("s_mov_b32 %s, %s" % (sr(S_W + 1), sr(S_P + 7)))
    a("s_lshl_b32 %s, s77, 16" % sr(S_XOFF))
    a("s_lshl_b32 %s, s76, 8" % sr(S_WOFF))
    a("s_and_b32 s82, s45, 1")
    a("s_lshl_b32 s82, s82, 2")
    a("s_add_u32 s82, s82, s77")
    a("s_and_b32 s82, s82, %d" % (0 if OPT["norot"] else 7))
    a("s_lshl_b32 %s, s77, 5" % sr(S_OFLAG))
    a("s_add_u32 %s, %s, s76" % (sr(S_OFLAG), sr(S_OFLAG)))
    a("s_add_u32 %s, %s, s46" % (sr(S_OFLAG), sr(S_OFLAG)))
    a.label("L_setup_done")
    a("s_lshl_b32 %s, %s, 1" % (sr(S_OFLAG), sr(S_OFLAG)))
    a("s_add_u32 %s, %s, s47" % (sr(S_OFLAG), sr(S_OFLAG)))
    a("s_lshl_b32 %s, %s, 13" % (sr(S_OOFF), sr(S_OFLAG)))
    a("s_lshl_b32 %s, %s, 3" % (sr(S_OFLAG), sr(S_OFLAG)))
    a("s_add_u32 %s, %s, %d" % (sr(S_OFLAG), sr(S_OFLAG), FLAG_O))
    if OPT["fuse"]:
        a("s_mov_b32 s64, s86")
        a("s_mov_b32 s65, s87")
        a("s_mov_b32 %s, 256" % sr(S_D + 2))
        a("s_mov_b32 %s, 0x00020000" % sr(S_D + 3))
        a("s_mov_b32 %s, 1048576" % sr(S_OUT + 2))
        a("s_mov_b32 %s, 0x00020000" % sr(S_OUT + 3))
        a("s_or_b32 %s, %s, s2" % (sr(S_TMP), sr(S_WAVE)))
        a("s_cbranch_scc1 L_nononce")
        a("s_or_b32 s90, s90, 1")
        a("v_mov_b32 v244, s90")
        a("v_mov_b32 v245, s91")
        a("v_mov_b32 v248, 0")
        a("s_mov_b64 exec, 1")
        a("buffer_store_dwordx2 v[244:245], v248, %s, 0 offen sc1" % sr(S_D, 4))
        a("s_mov_b64 exec, -1")
        a.label("L_nononce")
    a("s_mov_b32 %s, 262144" % sr(S_K + 2))
    a("s_mov_b32 %s, 262144" % sr(S_V + 2))
    a("s_mov_b32 %s, 0x00020000" % sr(S_K + 3))
    a("s_mov_b32 %s, 0x00020000" % sr(S_V + 3))
    a("s_mov_b32 %s, 524288" % sr(S_X + 2))
    a("s_mov_b32 %s, 0x00020000" % sr(S_X + 3))
    a("s_mov_b32 %s, 4194304" % sr(S_W + 2))
    a("s_mov_b32 %s, 0x00020000" % sr(S_W + 3))
    a("s_mov_b32 %s, %s" % (sr(S_O), sr(S_P + 18)))
    a("s_mov_b32 %s, %s" % (sr(S_O + 1), sr(S_P + 19)))
    a("s_mov_b32 %s, %d" % (sr(S_O + 2), 25 << 20))
    a("s_mov_b32 %s, 0x00020000" % sr(S_O + 3))
    a("s_lshl_b32 %s, s47, 13" % sr(S_PF))
    stamp_srd(a, sr(S_P + 18), sr(S_P + 19))
    stamp(a, 0)
    fstamp(a)
    L = V_LANE
    a("v_lshlrev_b32 %s, 4, %s" % (vr(V_L16), vr(L)))
    a("v_lshrrev_b32 v40, 4, %s" % vr(L))
    a("v_and_b32 v41, 15, %s" % vr(L))
    a("v_lshlrev_b32 v42, 2, v40")
    a("v_xor_b32 v42, v42, v41")
    a("v_lshlrev_b32 v42, 4, v42")
    a("v_lshl_add_u32 %s, v40, 8, v42" % vr(V_DMA))
    for n in range(1, 4):
        a("v_xor_b32 %s, %d, %s" % (vr(V_DMA + n), 16 * n, vr(V_DMA)))
    a("v_and_b32 v43, 3, v41")
    a("v_lshlrev_b32 v43, 2, v43")
    a("v_lshrrev_b32 v44, 2, v41")
    a("v_or_b32 v43, v43, v44")
    a("v_lshrrev_b32 v44, 5, %s" % vr(L))
    a("v_xor_b32 v45, v44, v43")
    a("v_lshlrev_b32 v45, 4, v45")
    a("v_and_b32 v46, 31, %s" % vr(L))
    a("v_lshl_add_u32 %s, v46, 8, v45" % vr(V_QA0))
    a("v_add_u32 %s, %s, %s" % (vr(V_KAD), sr(S_RING), vr(V_QA0)))
    for k in range(1, 8):
        a("v_xor_b32 %s, %d, %s" % (vr(V_KAD + k), 32 * k, vr(V_KAD)))
    a("v_lshlrev_b32 %s, 13, v46" % vr(V_OVOFF))
    a("v_lshl_add_u32 %s, v44, 4, %s" % (vr(V_OVOFF), vr(V_OVOFF)))
    a("s_lshl_b32 %s, s47, 7" % sr(S_TMP))
    a("v_add_u32 %s, %s, %s" % (vr(V_OVOFF), sr(S_TMP), vr(V_OVOFF)))
    a("v_lshrrev_b32 v45, 2, v41")
    a("v_and_b32 v46, 1, v40")
    a("v_and_b32 v47, 1, v41")
    a("v_lshl_add_u32 v47, v46, 1, v47")
    a("v_xor_b32 v47, v47, v44")
    a("v_lshl_add_u32 v47, v45, 2, v47")
    a("v_lshlrev_b32 v47, 4, v47")
    a("v_bfe_u32 v46, v41, 1, 1")
    a("v_lshl_add_u32 v47, v46, 3, v47")
    a("v_lshl_add_u32 v45, v44, 2, v45")
    a("v_lshl_add_u32 v47, v45, 8, v47")
    a("v_add_u32 %s, %s, v47" % (vr(V_VAD), sr(S_RING)))
    for k in range(1, 8):
        a("v_xor_b32 %s, %d, %s" % (vr(V_VAD + k), 32 * k, vr(V_VAD)))
    VB = 32
    gemm_lds_setup(a, L, 1024, 8192, 47, VB)
    a("s_cmp_eq_u32 %s, 1" % sr(S_TYPE))
    a("s_cbranch_scc1 L_typeA")

    def kv_unit(u, nt):
        srd = S_K if u % 2 == 0 else S_V
        o = []
        for g in range(2):
            o.append("s_add_u32 m0, %s, %d" % (sr(S_RING), u * 8192 + g * 4096))
            o.append("s_add_u32 %s, %s, %d" % (sr(S_TMP), sr(S_PF), (u // 2) * 16384 + g * 4096))
            for n in range(4):
                o.append("buffer_load_dwordx4 %s, %s, %s offen offset:%d%s lds" % (
                    vr(V_DMA + n), sr(srd, 4), sr(S_TMP), n * 1024, " nt" if nt else ""))
        return o

    def qproj(NX, NCG, off, nt):
        done = set()

        shared = NX == 1
        if shared:
            a("s_lshl_b32 %s, s47, 16" % sr(S_RING2))
            a("s_lshl_b32 %s, s46, 12" % sr(S_TMP))
            a("s_add_u32 %s, %s, %s" % (sr(S_RING2), sr(S_RING2), sr(S_TMP)))
            a("s_add_u32 %s, %s, %s" % (sr(S_PF), sr(S_PF), sr(S_TMP)))
            a("s_lshl_b32 %s, s47, 16" % sr(S_TMP))
            a("s_sub_u32 %s, %s, %s" % (sr(S_TMP), sr(S_TMP), sr(S_RING)))
            for k in range(8):
                a("v_add_u32 %s, %s, %s" % (vr(V_KAD + k), sr(S_TMP), vr(V_KAD + k)))
                a("v_add_u32 %s, %s, %s" % (vr(V_VAD + k), sr(S_TMP), vr(V_VAD + k)))

        if shared:
            kv_needs = [[0, 2], [4, 6], [1, 3], [5, 7], [8, 10], [12, 14]]
            kv_code = lambda k: half_unit(S_K if k % 2 == 0 else S_V, PERM[k // 2] * 16384 + (k % 2) * 8192, (k // 2) * 16384)
        else:
            kv_needs = [[0, 1, 2, 3], [4, 5, 6, 7], [8, 9, 10, 11], [12, 13, 14, 15]]
            kv_code = lambda k: kv_unit(k, nt)
        V_FR, V_ACC = 64, 128
        late = gemm_lds(a, NX, NCG, 262144, 8192, VB, V_FR, V_ACC, S_X, S_W, S_XOFF, S_WOFF, 46, 46,
                        kv_needs, kv_code, idle=lambda: init_pass(a))
        a("s_barrier")
        for x in late:
            emit(a, x)
        a("s_add_u32 %s, %s, %d" % (sr(S_PF), sr(S_PF), 49152 if shared else 32768))
        fstamp(a)
        stamp(a, 1)
        a("s_lshl_b32 %s, s47, 7" % sr(S_TMP))
        a("v_xor_b32 v29, %s, %s" % (sr(S_TMP), vr(V_QA0)))
        a("s_lshl_b32 %s, s46, 14" % sr(S_TMP))
        a("s_add_u32 %s, %s, %d" % (sr(S_TMP), sr(S_TMP), SCR))
        a("v_add_u32 v29, %s, v29" % sr(S_TMP))
        a("s_nop 7")
        k = 0
        for dbl in range(2):
            for half in range(2):
                x = dbl * 64 + half * 32
                if x:
                    a("v_xor_b32 v30, %d, v29" % x)
                for qbl in range(2):
                    src = V_ACC + (dbl * 2 + qbl) * 16 + half * 8
                    dst = 64 + k * 4
                    k += 1
                    for e in range(8):
                        a("v_mul_f32 %s, %s, %s" % (vr(src + e), sr(S_C), vr(src + e)))
                    for e in range(4):
                        a("v_cvt_pk_bf16_f32 %s, %s, %s" % (vr(dst + e), vr(src + 2 * e), vr(src + 2 * e + 1)))
                    a("ds_write_b128 %s, %s offset:%d" % ("v30" if x else "v29", vr(dst, 4), qbl * 8192))
        a("s_waitcnt lgkmcnt(0)")
        a("s_barrier")
        a("v_add_u32 v29, %s, %s" % (sr(S_TMP), vr(V_QA0)))
        for s in range(8):
            if s:
                a("v_xor_b32 v30, %d, v29" % (32 * s))
            for qb in range(2):
                a("ds_read_b128 %s, %s offset:%d" % (vr(V_Q + (qb * 8 + s) * 4, 4), "v30" if s else "v29", qb * 8192))
            if s == 5:
                a("s_waitcnt lgkmcnt(4)")
        a("s_waitcnt lgkmcnt(0)")
        fstamp(a)
        fdump(a)
        stamp(a, 2)
        if OPT["fuse"]:
            a("s_barrier")
            job_params(a)
            if OPT["touch"]:
                a("v_min_u32 v246, 12, %s" % vr(V_LANE))
                a("v_lshlrev_b32 v246, 21, v246")
                a("buffer_load_dword v247, v246, %s, 0 offen sc1" % sr(S_O, 4))
                a("v_and_b32 v246, 15, %s" % vr(V_LANE))
                a("v_lshlrev_b32 v246, 16, v246")
                a("buffer_load_dword v248, v246, %s, 0 offen sc1" % sr(S_OUT, 4))
            a("v_mov_b32 v246, 0")
            a("buffer_load_dwordx2 %s, v246, %s, 0 offen sc1" % (vr(V_NONCE, 2), sr(S_D, 4)))
        if shared:
            a("s_waitcnt vmcnt(%d)" % (23 if OPT["touch"] else 21))
            a("s_barrier")
            for x in k_reads_s(PERM[0]):
                a(x)
        else:
            a("s_waitcnt vmcnt(%d)" % (27 if OPT["touch"] else 25))
            for x in k_reads(0):
                a(x)

    qproj(2, 1, 4, OPT["nt"] & 1)
    tile_loop(a, "b", OPT["nt"] & 1)
    stamp(a, 5)
    combine2(a, "b", " sc1")
    need_nonce(a, "b")
    signal(a, S_OFLAG)
    stamp(a, 6)
    rjob(a, 0, "a")
    stamp(a, 3)
    rjob(a, 1, "b")
    stamp(a, 7)
    a("s_endpgm")
    for par in range(2):
        slow_path(a, 0, V_S, "b%d0" % par)
        slow_path(a, 1, V_S + 16, "b%d1" % par)
    a.label("L_typeA")
    qproj(1, 2, 8, OPT["nt"] & 2)
    tile_loop_shared(a, "a")
    stamp(a, 5)
    combine2(a, "a", " sc1")
    tail_a(a)
    a.label("L_end1")
    a("s_endpgm")
    wo_blocks(a, "a")
    for par in range(4):
        slow_path(a, 0, V_S, "a%d0" % par)
        slow_path(a, 1, V_S + 16, "a%d1" % par)


def descriptor(name, vgpr, accum, sgpr=102):
    return """.amdhsa_kernel %s
  .amdhsa_next_free_vgpr %d
  .amdhsa_next_free_sgpr %d
  .amdhsa_accum_offset %d
  .amdhsa_group_segment_fixed_size 0
  .amdhsa_kernarg_size 104
  .amdhsa_user_sgpr_count 2
  .amdhsa_user_sgpr_kernarg_segment_ptr 1
  .amdhsa_system_sgpr_workgroup_id_x 1
.end_amdhsa_kernel
""" % (name, vgpr, sgpr, accum)


def main():
    out = HEADER
    if OPT["fuse"]:
        out += "; @launch grid=(256,1,1) block=(256,1,1) lds=%d\n" % LDS1
        ks = ((K1NAME, kernel1),)
    else:
        out += "; @launch kernel=attn_kernel grid=(256,1,1) block=(256,1,1) lds=%d\n" % LDS1
        if OPT["k2"]:
            out += "; @launch kernel=oproj_kernel grid=(256,1,1) block=(256,1,1) lds=163840\n"
            out += "; @launch kernel=oreduce_kernel grid=(256,1,1) block=(256,1,1) lds=0\n"
        ks = (("attn_kernel", kernel1), ("oproj_kernel", kernel2), ("oreduce_kernel", kernel3))
    out += '.amdgcn_target "amdgcn-amd-amdhsa--gfx950"\n.text\n'
    for nm, fn in ks:
        a = Asm()
        out += ".globl %s\n.p2align 8\n.type %s,@function\n" % (nm, nm)
        fn(a)
        out += a.text()
    out += '.section .rodata,"a"\n.p2align 6\n'
    out += descriptor(K1NAME, 512, 256)
    if not OPT["fuse"]:
        out += ".p2align 6\n"
        out += descriptor("oproj_kernel", 160, 160)
        out += ".p2align 6\n"
        out += descriptor("oreduce_kernel", 72, 72, 32)
    open(sys.argv[1], "w").write(out)


K1NAME = (NAME + "_kernel") if OPT["fuse"] else "attn_kernel"
main()
```
